```python
import torch

def _softmax(x, axis=-1):
    return torch.softmax(x, dim=axis)
def _gelu(x):
    return torch.nn.functional.gelu(x, approximate="tanh")
def _silu(x):
    return torch.nn.functional.silu(x)
def _sigmoid(x):
    return torch.sigmoid(x)
def _layernorm(x, axis=-1, eps=1e-5):
    m = x.mean(dim=axis, keepdim=True)
    v = x.var(dim=axis, keepdim=True, unbiased=False)
    return (x - m) / torch.sqrt(v + eps)
def _scatter_add(tgt, idx, src, axis=0):
    return tgt.clone().index_add_(axis, idx, src)
def _segment_sum(src, seg, n):
    out = torch.zeros((n,) + src.shape[1:], dtype=src.dtype)
    return out.index_add_(0, seg, src)
def _pad(x, pw):
    flat = tuple(v for pair in reversed(pw) for v in pair)
    return torch.nn.functional.pad(x, flat)

kernel_name = 'sequential_preLN__grouped_kv_mqa__dense_activation_gelu__prompt'

def setup_inputs():

    _w = (lambda a: (lambda t: t.to(torch.bfloat16) if t.is_floating_point() else t)(torch.as_tensor(a)))
    def _A_setup():
        B, S, D, H = 1, 2048, 512, 32
        Dh = D // H
        return {
            "x": _w((lambda *s: torch.randn(*s, dtype=torch.bfloat16) * 0.05)(B, S, D)),
            "wq": _w((lambda *s: torch.randn(*s, dtype=torch.bfloat16) * 0.05)(D, H * Dh)),
            "wk": _w((lambda *s: torch.randn(*s, dtype=torch.bfloat16) * 0.05)(D, Dh)),
            "wv": _w((lambda *s: torch.randn(*s, dtype=torch.bfloat16) * 0.05)(D, Dh)),
            "wo": _w((lambda *s: torch.randn(*s, dtype=torch.bfloat16) * 0.05)(H * Dh, D)),
        }
    _A_in = _A_setup()

    def _B_setup():
        B, S, D, F = 1, 2048, 512, 1376
        return {
            "x": _w((lambda *s: torch.randn(*s, dtype=torch.bfloat16) * 0.05)(B, S, D)),
            "w1": _w((lambda *s: torch.randn(*s, dtype=torch.bfloat16) * 0.8)(D, F) * (D ** -0.5)),
            "b1": _w((lambda *s: torch.randn(*s, dtype=torch.bfloat16) * 0.8)(F) * 0.01),
            "w2": _w((lambda *s: torch.randn(*s, dtype=torch.bfloat16) * 0.2)(F, D) * (F ** -0.5)),
            "b2": _w((lambda *s: torch.randn(*s, dtype=torch.bfloat16) * 0.2)(D) * 0.01),
        }
    _B_in = _B_setup()

    return {
        "A_x": _A_in["x"],
        "A_wq": _A_in["wq"],
        "A_wk": _A_in["wk"],
        "A_wv": _A_in["wv"],
        "A_wo": _A_in["wo"],
        "B_x": _B_in["x"],
        "B_w1": _B_in["w1"],
        "B_b1": _B_in["b1"],
        "B_w2": _B_in["w2"],
        "B_b2": _B_in["b2"],
    }

def reference(A_x, A_wq, A_wk, A_wv, A_wo, B_x, B_w1, B_b1, B_w2, B_b2):
    def _A_ref(x, wq, wk, wv, wo):
        B, S, D = x.shape
        H = 32
        Dh = D // H
        q = (lambda x, *d: x.permute(*d))((x @ wq).reshape(B, S, H, Dh), 0, 2, 1, 3)
        k = x @ wk
        v = x @ wv
        scores = torch.einsum("bhqd,bkd->bhqk", q, k) * (Dh ** -0.5)
        p = _softmax(scores, axis=-1)
        o = torch.einsum("bhqk,bkd->bhqd", p, v)
        return (lambda x, *d: x.permute(*d))(o, 0, 2, 1, 3).reshape(B, S, H * Dh) @ wo

    def _B_ref(x, w1, b1, w2, b2):
        h = torch.einsum("bsd,df->bsf", x, w1) + b1
        h = _gelu(h)
        return torch.einsum("bsf,fd->bsd", h, w2) + b2

    x = A_x
    h = x + _A_ref(_layernorm(x, axis=-1), A_wq, A_wk, A_wv, A_wo)
    h2 = h + _B_ref(_layernorm(h, axis=-1), B_w1, B_b1, B_w2, B_b2)
    return h2
```

```python
class K:
    def __init__(self, name):
        self.name = name
        self.lines = []
        self.vmax = 0
        self.amax = -1
        self.smax = 0
        self.lab = 0
    def e(self, s):
        for l in s.split('\n'):
            l = l.strip()
            if l:
                self.lines.append('    ' + l if not l.endswith(':') else l)
    def c(self, s):
        self.lines.append('    ; ' + s)
    def label(self, base):
        self.lab += 1
        return f'L_{self.name}_{base}_{self.lab}'
    def srd(self, d, base, nbytes):
        self.e(f's_mov_b32 s{d}, s{base}')
        self.e(f's_and_b32 s{d+1}, s{base+1}, 0xffff')
        self.e(f's_mov_b32 s{d+2}, {nbytes:#x}')
        self.e(f's_mov_b32 s{d+3}, 0x20000')
    def srd_off(self, d, base, off, nbytes):
        self.e(f's_add_u32 s{d}, s{base}, {off:#x}')
        self.e(f's_addc_u32 s{d+1}, s{base+1}, 0')
        self.e(f's_and_b32 s{d+1}, s{d+1}, 0xffff')
        self.e(f's_mov_b32 s{d+2}, {nbytes:#x}')
        self.e(f's_mov_b32 s{d+3}, 0x20000')

def v(a, n=1):
    return f'v{a}' if n == 1 else f'v[{a}:{a+n-1}]'
def a_(a, n=1):
    return f'a{a}' if n == 1 else f'a[{a}:{a+n-1}]'
def s(a, n=1):
    return f's{a}' if n == 1 else f's[{a}:{a+n-1}]'

import re
def scan_regs(lines):
    vm, am, sm = -1, -1, -1
    for l in lines:
        l = l.split(';')[0]
        for m in re.finditer(r'\bv\[(\d+):(\d+)\]', l): vm = max(vm, int(m.group(2)))
        for m in re.finditer(r'\bv(\d+)\b', l): vm = max(vm, int(m.group(1)))
        for m in re.finditer(r'\ba\[(\d+):(\d+)\]', l): am = max(am, int(m.group(2)))
        for m in re.finditer(r'\ba(\d+)\b', l): am = max(am, int(m.group(1)))
        for m in re.finditer(r'\bs\[(\d+):(\d+)\]', l): sm = max(sm, int(m.group(2)))
        for m in re.finditer(r'\bs(\d+)\b', l): sm = max(sm, int(m.group(1)))
    return vm, am, sm

def emit_file(header_comment, launches, kernels):
    out = [header_comment.rstrip('\n')]
    for (n, g, b, l) in launches:
        out.append(f'; @launch kernel={n} grid=({g},1,1) block=({b},1,1) lds={l}')
    out.append('.amdgcn_target "amdgcn-amd-amdhsa--gfx950"')
    out.append('.text')
    for k in kernels:
        out.append(f'.globl {k.name}')
        out.append('.p2align 8')
        out.append(f'.type {k.name},@function')
        out.append(f'{k.name}:')
        out += k.lines
    out.append('.section .rodata,"a"')
    for k in kernels:
        vm, am, sm = scan_regs(k.lines)
        acc = ((vm + 1 + 3) // 4) * 4
        nfv = acc + am + 1 if am >= 0 else vm + 1
        out.append('.p2align 6')
        out.append(f'.amdhsa_kernel {k.name}')
        out.append(f'  .amdhsa_next_free_vgpr {nfv}')
        out.append(f'  .amdhsa_next_free_sgpr {max(sm + 1, 8)}')
        out.append(f'  .amdhsa_accum_offset {acc}')
        out.append('  .amdhsa_group_segment_fixed_size 0')
        out.append('  .amdhsa_kernarg_size 104')
        out.append('  .amdhsa_user_sgpr_count 2')
        out.append('  .amdhsa_user_sgpr_kernarg_segment_ptr 1')
        out.append('  .amdhsa_system_sgpr_workgroup_id_x 1')
        out.append('  .amdhsa_float_denorm_mode_32 3')
        out.append('.end_amdhsa_kernel')
    return '\n'.join(out) + '\n'
```

```python
import sys, math, struct
from asmlib import *

NAME = 'sequential_preLN__grouped_kv_mqa__dense_activation_gelu__prompt'
def f2u(x): return struct.unpack('<I', struct.pack('<f', x))[0]

WS_Q   = 0x000000
WS_K   = 0x200000
WS_V   = 0x210000
WS_MX  = 0x220000
WS_O   = 0x300000
WS_H   = 0x500000
WS_F   = 0x800000
WS_END = 0x800000 + 64*86*1024
WS_ST  = 0xE00000
STAMP = False

QS = 0.25 * math.log2(math.e)
EPS = 1e-5
ONES_BF = 0x3F803F80

def stamp(k, idx, kid, wsp, sw):
    if not STAMP: return
    lab = k.label('st')
    k.e(f's_cmp_lg_u32 s{sw}, 0')
    k.e(f's_cbranch_scc1 {lab}')
    k.e('s_memrealtime s[90:91]')
    k.e(f's_lshl_b32 s92, s2, 6')
    k.e(f's_add_u32 s92, s92, {WS_ST + kid*0x8000 + idx*8}')
    k.e('s_waitcnt lgkmcnt(0)')
    k.e('v_mov_b32 v250, s92')
    k.e('v_mov_b32 v252, s90')
    k.e('v_mov_b32 v253, s91')
    k.e(f'global_store_dwordx2 v250, v[252:253], s[{wsp}:{wsp+1}]')
    k.e(f'{lab}:')

def prologue_ids(k, nwg, sw):
    k.e(f's_cmp_ge_u32 s2, {nwg}')
    k.e(f's_cbranch_scc1 L_{k.name}_end')
    k.e('v_lshrrev_b32 v2, 6, v0')
    k.e('v_and_b32 v1, 63, v0')
    k.e(f'v_readfirstlane_b32 s{sw}, v2')

def dma(k, voff, srd, soff):
    k.e(f'buffer_load_dwordx4 v{voff}, s[{srd}:{srd+3}], s{soff} offen lds')

def gen_k1():
    k = K('qkv_kernel')
    XB, WB, KVB = 0, 65536, 131072
    SW, SCL, SJ, SM, SN, SKH = 40, 41, 42, 43, 44, 45
    k.e('s_load_dwordx8 s[4:11], s[0:1], 0')
    k.e('s_load_dwordx2 s[12:13], s[0:1], 96')
    prologue_ids(k, 256, SW)
    k.e('s_and_b32 s46, s2, 7')
    k.e('s_lshr_b32 s47, s2, 3')
    k.e(f's_and_b32 s{SJ}, s47, 7')
    k.e('s_lshr_b32 s47, s47, 3')
    k.e('s_lshl_b32 s46, s46, 2')
    k.e(f's_add_u32 s{SCL}, s46, s47')
    k.e(f's_and_b32 s{SM}, s{SW}, 1')
    k.e(f's_lshr_b32 s{SN}, s{SW}, 2')
    k.e(f's_bfe_u32 s{SKH}, s{SW}, 0x10001')
    k.e(f's_and_b32 s46, s{SW}, 3')
    k.e('s_lshl_b32 s47, s46, 2')
    k.e('v_lshrrev_b32 v2, 4, v1')
    k.e('v_add_u32 v2, s47, v2')
    k.e('v_and_b32 v3, 15, v1')
    k.e('v_xor_b32 v3, v3, v2')
    k.e('v_lshlrev_b32 v3, 4, v3')
    k.e('v_lshl_add_u32 v12, v2, 10, v3')
    k.e('v_lshrrev_b32 v2, 3, v1')
    k.e('v_and_b32 v3, 7, v1')
    k.e('v_lshrrev_b32 v4, 2, v1')
    k.e('v_and_b32 v4, 4, v4')
    k.e('v_xor_b32 v3, v3, v4')
    k.e('v_lshlrev_b32 v3, 4, v3')
    k.e('v_lshl_add_u32 v13, v2, 10, v3')
    k.e('v_lshlrev_b32 v14, 4, v1')
    k.e('s_waitcnt lgkmcnt(0)')
    stamp(k, 0, 0, 12, SW)
    k.e(f's_lshl_b32 s48, s{SCL}, 16')
    k.e('s_add_u32 s16, s4, s48')
    k.e('s_addc_u32 s17, s5, 0')
    k.e('s_and_b32 s17, s17, 0xffff')
    k.e('s_mov_b32 s18, 0x10000')
    k.e('s_mov_b32 s19, 0x20000')
    k.srd(20, 6, 512*1024)
    k.e(f's_cmp_eq_u32 s{SN}, 0')
    k.e('s_cselect_b32 s24, s8, s10')
    k.e('s_cselect_b32 s25, s9, s11')
    k.e('s_and_b32 s25, s25, 0xffff')
    k.e('s_mov_b32 s26, 0x4000')
    k.e('s_mov_b32 s27, 0x20000')
    k.srd(32, 12, WS_END)
    lab_nokv = k.label('nokv')
    k.e(f's_cmp_ge_u32 s{SJ}, 2')
    k.e(f's_cbranch_scc1 {lab_nokv}')
    k.e('s_lshl_b32 s48, s46, 10')
    k.e(f's_lshl_b32 s49, s{SN}, 14')
    k.e('s_add_u32 s49, s49, s48')
    k.e(f's_add_u32 s49, s49, {KVB}')
    for kc in range(4):
        k.e('s_mov_b32 m0, s49')
        k.e('s_add_u32 s49, s49, 4096')
        dma(k, 14, 24, 48)
        k.e('s_add_u32 s48, s48, 4096')
    k.e(f'{lab_nokv}:')
    k.e(f's_lshl_b32 s50, s{SN}, 14')
    k.e(f's_lshl_b32 s51, s{SN}, 12')
    k.e('s_lshl_b32 s48, s46, 10')
    k.e('s_add_u32 s51, s51, s48')
    k.e(f's_lshl_b32 s52, s{SW}, 14')
    k.e(f's_lshl_b32 s48, s{SJ}, 7')
    k.e('s_add_u32 s52, s52, s48')
    k.e(f's_lshl_b32 s53, s{SW}, 11')
    k.e(f's_add_u32 s53, s53, {WB}')
    for kc in range(4):
        for u in range(2):
            k.e(f's_add_u32 m0, s51, {kc*16384 + u*8192}')
            k.e(f's_add_u32 s48, s50, {kc*256 + u*32768}')
            dma(k, 12, 16, 48)
        for u in range(2):
            k.e(f's_add_u32 m0, s53, {kc*16384 + u*1024}')
            k.e(f's_add_u32 s48, s52, {kc*131072 + u*8192}')
            dma(k, 13, 20, 48)
    k.e('v_and_b32 v15, 31, v1')
    k.e('v_lshrrev_b32 v96, 5, v1')
    k.e(f's_lshl_b32 s48, s{SKH}, 1')
    k.e('v_add_u32 v2, s48, v96')
    k.e('v_and_b32 v3, 15, v1')
    k.e('v_xor_b32 v2, v2, v3')
    k.e('v_lshlrev_b32 v2, 4, v2')
    k.e('v_lshl_add_u32 v2, v15, 8, v2')
    k.e(f's_lshl_b32 s48, s{SN}, 13')
    k.e('v_add_u32 v2, s48, v2')
    k.e('v_xor_b32 v3, 64, v2')
    k.e('v_xor_b32 v4, 0x80, v2')
    k.e('v_xor_b32 v5, 0xc0, v2')
    k.e('v_bfe_u32 v97, v1, 2, 2')
    k.e('v_and_b32 v98, 3, v1')
    k.e('v_bfe_u32 v99, v1, 4, 1')
    k.e('v_lshl_add_u32 v100, v96, 3, v97')
    k.e('v_lshrrev_b32 v6, 1, v97')
    k.e(f'v_xor_b32 v6, s{SM}, v6')
    k.e('v_lshlrev_b32 v6, 6, v6')
    k.e('v_lshl_add_u32 v6, v100, 7, v6')
    k.e('v_lshl_add_u32 v6, v99, 5, v6')
    k.e('v_lshl_add_u32 v6, v98, 3, v6')
    k.e(f's_lshl_b32 s48, s{SKH}, 11')
    k.e(f's_add_u32 s48, s48, {WB}')
    k.e('v_add_u32 v6, s48, v6')
    k.e('v_lshlrev_b32 v7, 14, v99')
    k.e('v_lshl_add_u32 v7, v100, 5, v7')
    k.e('v_lshl_add_u32 v7, v98, 3, v7')
    k.e(f's_lshl_b32 s48, s{SKH}, 9')
    k.e(f's_add_u32 s48, s48, {KVB}')
    k.e('v_add_u32 v7, s48, v7')
    for r in range(16, 48): k.e(f'v_mov_b32 v{r}, 0')
    for r in range(8, 12): k.e(f'v_mov_b32 v{r}, 0')
    k.e(f's_mov_b32 s54, {ONES_BF:#x}')
    lab_plain, lab_kor, lab_vor, lab_epi = k.label('plain'), k.label('kor'), k.label('vor'), k.label('epi')
    k.e(f's_cmp_lg_u32 s{SJ}, s{SN}')
    k.e(f's_cbranch_scc1 {lab_plain}')
    k.e(f's_cmp_eq_u32 s{SM}, 0')
    k.e(f's_cbranch_scc1 {lab_kor}')
    k.e(f's_branch {lab_vor}')
    B0, A0, KV0 = 48, 64, 80
    def reads(kc, i, duty):
        k.e(f'ds_read_b128 {v(B0+4*i,4)}, v{2+i} offset:{kc*16384}')
        for t in range(2):
            k.e(f'ds_read_b64_tr_b16 {v(A0+4*i+2*t,2)}, v6 offset:{(16*(8*kc+2*i)+4*t)*128}')
        if duty:
            for t in range(2):
                k.e(f'ds_read_b64_tr_b16 {v(KV0+4*i+2*t,2)}, v7 offset:{(16*(8*kc+2*i)+4*t)*32}')
    def proc(i, mode):
        k.e(f'v_mfma_f32_32x32x16_bf16 v[16:31], {v(A0+4*i,4)}, {v(B0+4*i,4)}, v[16:31]')
        for r in range(4):
            k.e(f'v_dot2c_f32_bf16 v8, s54, v{B0+4*i+r}')
            k.e(f'v_dot2c_f32_bf16 v9, v{B0+4*i+r}, v{B0+4*i+r}')
            k.e(f'v_dot2c_f32_bf16 v10, s54, v{A0+4*i+r}')
            if mode: k.e(f'v_dot2c_f32_bf16 v11, s54, v{KV0+4*i+r}')
            if r == 1 and mode == 1:
                k.e(f'v_mfma_f32_32x32x16_bf16 v[32:47], {v(KV0+4*i,4)}, {v(B0+4*i,4)}, v[32:47]')
            if r == 1 and mode == 2:
                k.e(f'v_mfma_f32_32x32x16_bf16 v[32:47], {v(B0+4*i,4)}, {v(KV0+4*i,4)}, v[32:47]')
    for mode, lab in ((1, lab_kor), (2, lab_vor), (0, lab_plain)):
        k.e(f'{lab}:')
        for kc in range(4):
            k.e(f's_waitcnt vmcnt({(3-kc)*4})')
            k.e('s_barrier')
            if mode == 0:
                for i in range(4): reads(kc, i, False)
                for i in range(4):
                    k.e(f's_waitcnt lgkmcnt({9-3*i})')
                    proc(i, 0)
            else:
                for i in range(3): reads(kc, i, True)
                k.e('s_waitcnt lgkmcnt(10)')
                proc(0, mode)
                reads(kc, 3, True)
                k.e('s_waitcnt lgkmcnt(10)')
                proc(1, mode)
                k.e('s_waitcnt lgkmcnt(5)')
                proc(2, mode)
                k.e('s_waitcnt lgkmcnt(0)')
                proc(3, mode)
        if mode != 0: k.e(f's_branch {lab_epi}')
    k.e(f'{lab_epi}:')
    stamp(k, 1, 0, 12, SW)
    SC_ACC, SC_KV, SC_ST, SC_CS = 0, 16384, 32768, 34816
    k.e('s_nop 7')
    k.e('v_permlane32_swap_b32 v8, v9')
    k.e('v_permlane32_swap_b32 v10, v11')
    k.e('s_barrier')
    k.e('v_add_f32 v8, v8, v9')
    k.e('v_add_f32 v10, v10, v11')
    k.e(f's_lshl_b32 s48, s{SW}, 11')
    k.e('v_add_u32 v2, s48, v14')
    k.e('v_xor_b32 v3, 0x1000, v2')
    k.e(f's_lshl_b32 s49, s{SW}, 8')
    k.e('v_lshlrev_b32 v4, 2, v1')
    k.e('v_add_u32 v4, s49, v4')
    k.e(f'ds_write_b32 v4, v8 offset:{SC_ST}')
    k.e(f'ds_write_b32 v4, v10 offset:{SC_CS}')
    l1, l2 = k.label('kh1'), k.label('khj')
    k.e('s_nop 4')
    k.e(f's_cmp_eq_u32 s{SKH}, 1')
    k.e(f's_cbranch_scc1 {l1}')
    k.e(f'ds_write_b128 v2, v[24:27] offset:{SC_ACC}')
    k.e(f'ds_write_b128 v2, v[28:31] offset:{SC_ACC+1024}')
    k.e(f'ds_write_b128 v2, v[40:43] offset:{SC_KV}')
    k.e(f'ds_write_b128 v2, v[44:47] offset:{SC_KV+1024}')
    k.e(f's_branch {l2}')
    k.e(f'{l1}:')
    k.e(f'ds_write_b128 v2, v[16:19] offset:{SC_ACC}')
    k.e(f'ds_write_b128 v2, v[20:23] offset:{SC_ACC+1024}')
    k.e(f'ds_write_b128 v2, v[32:35] offset:{SC_KV}')
    k.e(f'ds_write_b128 v2, v[36:39] offset:{SC_KV+1024}')
    k.e('s_waitcnt lgkmcnt(0)')
    for r in range(8):
        k.e(f'v_mov_b32 v{16+r}, v{24+r}')
        k.e(f'v_mov_b32 v{32+r}, v{40+r}')
    k.e(f'{l2}:')
    k.e('s_waitcnt lgkmcnt(0)')
    k.e('s_barrier')
    k.e(f'ds_read_b128 v[48:51], v3 offset:{SC_ACC}')
    k.e(f'ds_read_b128 v[52:55], v3 offset:{SC_ACC+1024}')
    k.e(f'ds_read_b128 v[56:59], v3 offset:{SC_KV}')
    k.e(f'ds_read_b128 v[60:63], v3 offset:{SC_KV+1024}')
    k.e('v_lshlrev_b32 v4, 2, v15')
    k.e('v_add_u32 v4, s49, v4')
    k.e('v_xor_b32 v5, 0x200, v4')
    k.e(f'ds_read_b32 v64, v4 offset:{SC_ST}')
    k.e(f'ds_read_b32 v65, v4 offset:{SC_ST+128}')
    k.e(f'ds_read_b32 v66, v5 offset:{SC_ST}')
    k.e(f'ds_read_b32 v67, v5 offset:{SC_ST+128}')
    k.e(f's_lshl_b32 s48, s{SKH}, 6')
    k.e('s_add_u32 s48, s48, s49')
    k.e('v_lshlrev_b32 v6, 4, v96')
    k.e('v_add_u32 v6, s48, v6')
    k.e('v_xor_b32 v7, 0x200, v6')
    k.e(f'ds_read_b128 v[68:71], v6 offset:{SC_CS}')
    k.e(f'ds_read_b128 v[72:75], v6 offset:{SC_CS+32}')
    k.e(f'ds_read_b128 v[76:79], v7 offset:{SC_CS}')
    k.e(f'ds_read_b128 v[80:83], v7 offset:{SC_CS+32}')
    k.e('s_waitcnt lgkmcnt(4)')
    k.e('v_add_f32 v64, v64, v66')
    k.e('v_add_f32 v65, v65, v67')
    k.e(f'v_mul_f32 v64, {f2u(1/512):#x}, v64')
    k.e(f'v_mul_f32 v65, {f2u(1/512):#x}, v65')
    k.e('v_fma_f32 v65, -v64, v64, v65')
    k.e('v_max_f32 v65, 0, v65')
    k.e(f'v_add_f32 v65, {f2u(EPS):#x}, v65')
    k.e('v_rsq_f32 v65, v65')
    for r in range(8):
        k.e(f'v_add_f32 v{16+r}, v{16+r}, v{48+r}')
        k.e(f'v_add_f32 v{32+r}, v{32+r}, v{56+r}')
    k.e(f'v_mul_f32 v66, {f2u(QS):#x}, v65')
    k.e('s_waitcnt lgkmcnt(0)')
    for r in range(8):
        k.e(f'v_add_f32 v{68+r}, v{68+r}, v{76+r}')
    for r in range(8):
        k.e(f'v_fma_f32 v{16+r}, -v64, v{68+r}, v{16+r}')
    for r in range(8):
        k.e(f'v_mul_f32 v{16+r}, v66, v{16+r}')
    for r in range(4):
        k.e(f'v_cvt_pk_bf16_f32 v{24+r}, v{16+2*r}, v{17+2*r}')
    k.e(f's_lshl_b32 s55, s{SCL}, 1')
    k.e(f's_add_u32 s55, s55, s{SN}')
    k.e('s_lshl_b32 s48, s55, 5')
    k.e(f's_lshl_b32 s50, s{SJ}, 2')
    k.e('s_add_u32 s48, s48, s50')
    k.e(f's_lshl_b32 s50, s{SM}, 1')
    k.e('s_add_u32 s48, s48, s50')
    k.e(f's_add_u32 s48, s48, s{SKH}')
    k.e('s_lshl_b32 s48, s48, 10')
    k.e('buffer_store_dwordx4 v[24:27], v14, s[32:35], s48 offen')
    k.e(f's_cmp_lg_u32 s{SJ}, s{SN}')
    k.e(f's_cbranch_scc1 L_{k.name}_end')
    lv = k.label('vepi')
    k.e(f's_cmp_eq_u32 s{SM}, 1')
    k.e(f's_cbranch_scc1 {lv}')
    k.e(f's_cmp_eq_u32 s{SKH}, 1')
    k.e(f's_cbranch_scc1 L_{k.name}_end')
    k.e(f'ds_read_b128 v[68:71], v6 offset:{SC_CS+128}')
    k.e(f'ds_read_b128 v[72:75], v6 offset:{SC_CS+128+32}')
    k.e(f'ds_read_b128 v[76:79], v7 offset:{SC_CS+128}')
    k.e(f'ds_read_b128 v[80:83], v7 offset:{SC_CS+128+32}')
    k.e('s_waitcnt lgkmcnt(0)')
    for r in range(8):
        k.e(f'v_add_f32 v{68+r}, v{68+r}, v{76+r}')
    for r in range(8):
        k.e(f'v_fma_f32 v{32+r}, -v64, v{68+r}, v{32+r}')
    for r in range(8):
        k.e(f'v_mul_f32 v{32+r}, v65, v{32+r}')
    for r in range(4):
        k.e(f'v_cvt_pk_bf16_f32 v{40+r}, v{32+2*r}, v{33+2*r}')
    k.e('s_lshl_b32 s48, s55, 10')
    k.e(f's_add_u32 s48, s48, {WS_K:#x}')
    k.e('buffer_store_dwordx4 v[40:43], v14, s[32:35], s48 offen')
    k.e('v_mov_b32 v8, 0')
    for r in range(4):
        k.e(f'v_dot2c_f32_bf16 v8, v{40+r}, v{40+r}')
    k.e('s_nop 3')
    k.e('v_mov_b32 v9, v8')
    k.e('s_nop 1')
    k.e('v_permlane32_swap_b32 v8, v9')
    k.e('s_nop 1')
    k.e('v_add_f32 v8, v8, v9')
    for sh in (8, 4, 2, 1):
        k.e('s_nop 1')
        k.e(f'v_max_u32_dpp v8, v8, v8 row_ror:{sh} row_mask:0xf bank_mask:0xf')
    k.e('s_nop 1')
    k.e('v_readlane_b32 s50, v8, 0')
    k.e('v_readlane_b32 s51, v8, 16')
    k.e('s_nop 3')
    k.e('s_max_u32 s50, s50, s51')
    k.e('v_mov_b32 v8, s50')
    k.e('s_lshl_b32 s48, s55, 2')
    k.e(f's_add_u32 s48, s48, {WS_MX:#x}')
    k.e('v_mov_b32 v9, 0')
    k.e('s_mov_b64 exec, 1')
    k.e('buffer_store_dword v8, v9, s[32:35], s48 offen')
    k.e('s_endpgm')
    k.e(f'{lv}:')
    k.e(f'ds_read_b128 v[68:71], v6 offset:{SC_ST}')
    k.e(f'ds_read_b128 v[72:75], v6 offset:{SC_ST+32}')
    k.e(f'ds_read_b128 v[76:79], v7 offset:{SC_ST}')
    k.e(f'ds_read_b128 v[80:83], v7 offset:{SC_ST+32}')
    k.e(f'ds_read_b128 v[84:87], v6 offset:{SC_ST+128}')
    k.e(f'ds_read_b128 v[88:91], v6 offset:{SC_ST+128+32}')
    k.e(f'ds_read_b128 v[48:51], v7 offset:{SC_ST+128}')
    k.e(f'ds_read_b128 v[52:55], v7 offset:{SC_ST+128+32}')
    k.e(f'ds_read_b32 v64, v4 offset:{SC_CS+128}')
    k.e(f'ds_read_b32 v65, v5 offset:{SC_CS+128}')
    k.e('s_waitcnt lgkmcnt(0)')
    k.e('v_add_f32 v64, v64, v65')
    for r in range(8):
        k.e(f'v_add_f32 v{68+r}, v{68+r}, v{76+r}')
        k.e(f'v_add_f32 v{84+r}, v{84+r}, v{48+r}')
    for r in range(8):
        k.e(f'v_mul_f32 v{68+r}, {f2u(1/512):#x}, v{68+r}')
        k.e(f'v_mul_f32 v{84+r}, {f2u(1/512):#x}, v{84+r}')
    for r in range(8):
        k.e(f'v_fma_f32 v{84+r}, -v{68+r}, v{68+r}, v{84+r}')
    for r in range(8):
        k.e(f'v_max_f32 v{84+r}, 0, v{84+r}')
    for r in range(8):
        k.e(f'v_add_f32 v{84+r}, {f2u(EPS):#x}, v{84+r}')
    for r in range(8):
        k.e(f'v_rsq_f32 v{84+r}, v{84+r}')
    for r in range(8):
        k.e(f'v_fma_f32 v{32+r}, -v{68+r}, v64, v{32+r}')
    for r in range(8):
        k.e(f'v_mul_f32 v{32+r}, v{84+r}, v{32+r}')
    for r in range(4):
        k.e(f'v_cvt_pk_bf16_f32 v{40+r}, v{32+2*r}, v{33+2*r}')
    for r in range(8):
        k.e(f'v_and_b32 v{32+r}, 0x7fffffff, v{32+r}')
    k.e('v_max3_u32 v8, v32, v33, v34')
    k.e('v_max3_u32 v8, v8, v35, v36')
    k.e('v_max3_u32 v8, v8, v37, v38')
    k.e('v_max_u32 v8, v8, v39')
    for sh in (8, 4, 2, 1):
        k.e('s_nop 1')
        k.e(f'v_max_u32_dpp v8, v8, v8 row_ror:{sh} row_mask:0xf bank_mask:0xf')
    k.e('s_nop 1')
    k.e('v_readlane_b32 s50, v8, 16')
    k.e('v_readlane_b32 s51, v8, 48')
    k.e('v_and_b32 v2, 15, v1')
    k.e('v_lshl_add_u32 v2, v96, 4, v2')
    k.e('v_lshlrev_b32 v2, 4, v2')
    k.e('s_max_u32 s50, s50, s51')
    k.e('s_lshl_b32 s48, s55, 10')
    k.e(f's_lshl_b32 s51, s{SKH}, 9')
    k.e('s_add_u32 s48, s48, s51')
    k.e(f's_add_u32 s48, s48, {WS_V:#x}')
    k.e('v_mov_b32 v8, s50')
    k.e('v_mov_b32 v9, 0')
    k.e('s_mov_b32 exec_lo, 0xffff0000')
    k.e('s_mov_b32 exec_hi, 0xffff0000')
    k.e('buffer_store_dwordx4 v[40:43], v2, s[32:35], s48 offen')
    k.e('s_lshl_b32 s48, s55, 1')
    k.e(f's_add_u32 s48, s48, s{SKH}')
    k.e('s_lshl_b32 s48, s48, 2')
    k.e(f's_add_u32 s48, s48, {WS_MX+256:#x}')
    k.e('s_mov_b64 exec, 1')
    k.e('buffer_store_dword v8, v9, s[32:35], s48 offen')
    k.e(f'L_{k.name}_end:')
    k.e('s_endpgm')
    return k


TSAFE = 50.0
def cluster_ids(k, SW, SCL, SJ, SM, SN, SKH):
    k.e('s_and_b32 s46, s2, 7')
    k.e('s_lshr_b32 s47, s2, 3')
    k.e(f's_and_b32 s{SJ}, s47, 7')
    k.e('s_lshr_b32 s47, s47, 3')
    k.e('s_lshl_b32 s46, s46, 2')
    k.e(f's_add_u32 s{SCL}, s46, s47')
    k.e(f's_and_b32 s{SM}, s{SW}, 1')
    k.e(f's_lshr_b32 s{SN}, s{SW}, 2')
    k.e(f's_bfe_u32 s{SKH}, s{SW}, 0x10001')

def wave_umax(k, vr, sd, st):
    for sh in (8, 4, 2, 1):
        k.e('s_nop 1')
        k.e(f'v_max_u32_dpp v{vr}, v{vr}, v{vr} row_ror:{sh} row_mask:0xf bank_mask:0xf')
    k.e('s_nop 1')
    k.e(f'v_readlane_b32 s{sd}, v{vr}, 0')
    k.e(f'v_readlane_b32 s{st}, v{vr}, 16')
    k.e(f'v_readlane_b32 s{st+1}, v{vr}, 32')
    k.e(f'v_readlane_b32 s{st+2}, v{vr}, 48')
    k.e('s_nop 3')
    k.e(f's_max_u32 s{sd}, s{sd}, s{st}')
    k.e(f's_max_u32 s{st+1}, s{st+1}, s{st+2}')
    k.e(f's_max_u32 s{sd}, s{sd}, s{st+1}')

def gen_k2():
    k = K('attn_kernel')
    SW, SCL, SJ, SM, SN, SKH = 40, 41, 42, 43, 44, 45
    QA, QB, SA, SB, OA, OB, NA, NB, P = 4, 8, 16, 32, 48, 64, 80, 96, 112
    KB = [120, 124]; VB = [128, 136]
    VK, VV = 2, 3
    k.e('s_load_dwordx2 s[12:13], s[0:1], 96')
    prologue_ids(k, 256, SW)
    cluster_ids(k, SW, SCL, SJ, SM, SN, SKH)
    k.e('v_lshlrev_b32 v14, 4, v1')
    k.e('v_lshlrev_b32 v15, 2, v1')
    k.e(f's_lshl_b32 s55, s{SCL}, 1')
    k.e(f's_add_u32 s55, s55, s{SN}')
    k.e('s_lshl_b32 s55, s55, 5')
    k.e(f's_lshl_b32 s50, s{SJ}, 2')
    k.e('s_add_u32 s55, s55, s50')
    k.e(f's_lshl_b32 s50, s{SM}, 1')
    k.e('s_add_u32 s55, s55, s50')
    k.e('s_lshl_b32 s55, s55, 10')
    k.e(f's_mov_b32 s56, {WS_MX:#x}')
    k.e(f's_lshl_b32 s48, s{SW}, 10')
    k.e(f's_add_u32 s49, s48, {WS_K:#x}')
    k.e('s_waitcnt lgkmcnt(0)')
    stamp(k, 0, 1, 12, SW)
    k.srd(32, 12, WS_END)
    k.e(f'buffer_load_dwordx4 {v(QA,4)}, v14, s[32:35], s55 offen')
    k.e(f'buffer_load_dwordx4 {v(QB,4)}, v14, s[32:35], s55 offen offset:1024')
    k.e(f'buffer_load_dword v144, v15, s[32:35], s56 offen')
    k.e(f'buffer_load_dword v145, v15, s[32:35], s56 offen offset:256')
    k.e(f'buffer_load_dword v146, v15, s[32:35], s56 offen offset:512')
    for st in range(8):
        for kv in range(2):
            off = st*8192 + kv*65536
            k.e(f's_add_u32 m0, s48, {off}')
            k.e(f's_add_u32 s50, s49, {off}')
            dma(k, 14, 32, 50)
    for r in range(OA, NB+16): k.e(f'v_mov_b32 v{r}, 0')
    for r in range(P, P+8): k.e(f'v_mov_b32 v{r}, 0')
    k.e(f's_mov_b32 s54, {ONES_BF:#x}')
    for r in range(VB[0], VB[1]+8): k.e(f'v_mov_b32 v{r}, s54')
    k.e(f's_lshl_b32 s50, s{SKH}, 10')
    k.e(f'v_add_u32 v{VK}, s50, v14')
    k.e('v_and_b32 v12, 15, v1')
    k.e('v_lshrrev_b32 v13, 5, v1')
    k.e('v_lshl_add_u32 v12, v13, 4, v12')
    k.e('v_lshlrev_b32 v12, 4, v12')
    k.e('s_add_u32 s50, s50, 65536')
    k.e(f'v_add_u32 v{VV}, s50, v12')
    k.e('s_mov_b32 s58, 0xffff0000')
    k.e('s_mov_b32 s59, 0xffff0000')
    k.e('v_mov_b32 v12, 0')
    k.e('v_mov_b32 v13, 0')
    k.e('s_waitcnt vmcnt(16)')
    for r in range(4):
        k.e(f'v_dot2c_f32_bf16 v12, v{QA+r}, v{QA+r}')
        k.e(f'v_dot2c_f32_bf16 v13, v{QB+r}, v{QB+r}')
    k.e('v_max_u32 v145, v145, v146')
    wave_umax(k, 144, 60, 62)
    wave_umax(k, 145, 61, 62)
    k.e('v_permlane32_swap_b32 v12, v13')
    k.e('s_nop 1')
    k.e('v_add_f32 v12, v12, v13')
    k.e('v_mul_f32 v12, s60, v12')
    k.e(f'v_mov_b32 v13, {f2u(TSAFE*TSAFE):#x}')
    k.e('v_cmp_nle_f32 vcc, v12, v13')
    lfb, lmain = k.label('fallback'), k.label('main')
    k.e(f's_cmp_gt_u32 s61, {f2u(2.0**60):#x}')
    k.e(f's_cbranch_scc1 {lfb}')
    k.e('s_nop 2')
    k.e('s_cmp_lg_u64 vcc, 0')
    k.e(f's_cbranch_scc1 {lfb}')
    k.e(f'{lmain}:')
    k.e('s_waitcnt vmcnt(14)')
    k.e('s_barrier')
    k.e(f'ds_read_b128 {v(KB[0],4)}, v{VK}')
    k.e(f'ds_read_b128 {v(KB[1],4)}, v{VK} offset:2048')
    k.e('s_mov_b64 exec, s[58:59]')
    k.e(f'ds_read_b128 {v(VB[0],4)}, v{VV}')
    k.e(f'ds_read_b128 {v(VB[0]+4,4)}, v{VV} offset:512')
    k.e('s_mov_b64 exec, -1')
    k.e('s_waitcnt lgkmcnt(0)')
    k.e(f'v_mfma_f32_32x32x16_bf16 {v(SA,16)}, {v(KB[0],4)}, {v(QA,4)}, {v(NA,16)}')
    k.e('s_mov_b32 s57, 0')
    k.e('s_nop 7')
    k.e('s_nop 3')
    def mf(d, a, b, c): k.e(f'v_mfma_f32_32x32x16_bf16 {v(d,16)}, {v(a,4)}, {v(b,4)}, {v(c,16)}')
    def ex(r): k.e(f'v_exp_f32 v{r}, v{r}')
    def pk(i, X): k.e(f'v_cvt_pk_bf16_f32 v{P+i}, v{X+2*i}, v{X+2*i+1}')
    def phase(X, Y, OX, OY, QY, NY, Vprev1, Vcur0, Kf, mid=None):
        ex(X); ex(X+1)
        mf(OY, Vprev1, P+4, OY)
        for r in range(2, 5): ex(X+r)
        mf(Y, Kf, QY, NY)
        for r in range(5, 8): ex(X+r)
        for i in range(4): pk(i, X)
        ex(X+8); ex(X+9)
        mf(OX, Vcur0, P, OX)
        if mid: mid()
        for r in range(10, 16): ex(X+r)
        for i in range(4, 8): pk(i, X)
    lloop, lw1, lw2, lbody = k.label('loop'), k.label('w1'), k.label('w2'), k.label('body')
    k.e('.p2align 6')
    k.e(f'{lloop}:')
    for p in range(2):
        def mid(p=p):
            k.e(f'ds_read_b128 {v(KB[p],4)}, v{VK} offset:{2048*(p+2)}')
            k.e('s_mov_b64 exec, s[58:59]')
            k.e(f'ds_read_b128 {v(VB[1-p],4)}, v{VV} offset:{2048*(p+1)}')
            k.e(f'ds_read_b128 {v(VB[1-p]+4,4)}, v{VV} offset:{2048*(p+1)+512}')
            k.e('s_mov_b64 exec, -1')
        k.e('s_waitcnt lgkmcnt(0)')
        phase(SA, SB, OA, OB, QB, NB, VB[1-p]+4, VB[p], KB[p], mid)
        phase(SB, SA, OB, OA, QA, NA, VB[p]+4, VB[p], KB[1-p])
    k.e(f'v_add_u32 v{VK}, 4096, v{VK}')
    k.e(f'v_add_u32 v{VV}, 4096, v{VV}')
    k.e('s_add_u32 s57, s57, 1')
    k.e('s_cmp_eq_u32 s57, 1')
    k.e(f's_cbranch_scc1 {lw1}')
    k.e('s_cmp_eq_u32 s57, 5')
    k.e(f's_cbranch_scc1 {lw2}')
    k.e('s_cmp_lt_u32 s57, 16')
    k.e(f's_cbranch_scc1 {lloop}')
    mf(OB, VB[1]+4, P+4, OB)
    stamp(k, 1, 1, 12, SW)
    SC = 131072 + 8192
    k.e(f's_mul_i32 s48, s{SW}, 3072')
    k.e(f's_xor_b32 s49, s{SW}, 2')
    k.e('s_mul_i32 s49, s49, 3072')
    k.e(f's_add_u32 s48, s48, {SC}')
    k.e(f's_add_u32 s49, s49, {SC}')
    k.e('v_add_u32 v2, s48, v14')
    k.e('v_add_u32 v3, s49, v14')
    k.e('s_nop 7')
    k.e('s_waitcnt lgkmcnt(0)')
    l1, l2 = k.label('kh1'), k.label('khj')
    k.e(f's_cmp_eq_u32 s{SKH}, 1')
    k.e(f's_cbranch_scc1 {l1}')
    k.e(f'ds_write_b128 v2, {v(OB+8,4)}')
    k.e(f'ds_write_b128 v2, {v(OB+12,4)} offset:1024')
    k.e(f'ds_write_b32 v2, v{OB} offset:2048')
    k.e(f's_branch {l2}')
    k.e(f'{l1}:')
    k.e(f'ds_write_b128 v2, {v(OA+8,4)}')
    k.e(f'ds_write_b128 v2, {v(OA+12,4)} offset:1024')
    k.e(f'ds_write_b32 v2, v{OA} offset:2048')
    k.e('s_waitcnt lgkmcnt(0)')
    k.e(f'v_mov_b32 v{OA}, v{OB}')
    for r in range(8, 16): k.e(f'v_mov_b32 v{OA+r}, v{OB+r}')
    k.e(f'{l2}:')
    k.e('s_waitcnt lgkmcnt(0)')
    k.e('s_barrier')
    k.e(f'ds_read_b32 v{SA}, v3 offset:2048')
    k.e(f'ds_read_b128 {v(SA+8,4)}, v3')
    k.e(f'ds_read_b128 {v(SA+12,4)}, v3 offset:1024')
    k.e(f's_lshl_b32 s50, s{SKH}, 10')
    k.e('s_add_u32 s55, s55, s50')
    k.e(f's_add_u32 s55, s55, {WS_O:#x}')
    k.e('s_waitcnt lgkmcnt(2)')
    k.e(f'v_add_f32 v{OA}, v{OA}, v{SA}')
    k.e(f'v_rcp_f32 v{OA}, v{OA}')
    k.e('s_waitcnt lgkmcnt(0)')
    for r in range(8, 16): k.e(f'v_add_f32 v{OA+r}, v{OA+r}, v{SA+r}')
    for r in range(8, 16): k.e(f'v_mul_f32 v{OA+r}, v{OA}, v{OA+r}')
    for i in range(4): k.e(f'v_cvt_pk_bf16_f32 v{P+i}, v{OA+8+2*i}, v{OA+9+2*i}')
    k.e(f'buffer_store_dwordx4 {v(P,4)}, v14, s[32:35], s55 offen')
    stamp(k, 2, 1, 12, SW)
    k.e('s_endpgm')
    k.e(f'{lw1}:')
    k.e('s_waitcnt vmcnt(10)')
    k.e('s_barrier')
    k.e(f's_branch {lloop}')
    k.e(f'{lw2}:')
    k.e('s_waitcnt vmcnt(0)')
    k.e('s_barrier')
    k.e(f's_branch {lloop}')
    k.e(f'{lfb}:')
    k.e(f's_mov_b32 s60, {WS_K:#x}')
    k.e('v_mov_b32 v12, 0xff800000')
    k.e('v_mov_b32 v13, 0xff800000')
    lf = k.label('fbl')
    k.e(f'{lf}:')
    k.e(f'buffer_load_dwordx4 {v(KB[0],4)}, v14, s[32:35], s60 offen')
    k.e('s_waitcnt vmcnt(0)')
    k.e(f'v_mfma_f32_32x32x16_bf16 {v(SA,16)}, {v(KB[0],4)}, {v(QA,4)}, 0')
    k.e(f'v_mfma_f32_32x32x16_bf16 {v(SB,16)}, {v(KB[0],4)}, {v(QB,4)}, 0')
    k.e('s_nop 15')
    for r in range(0, 16, 2):
        k.e(f'v_max3_f32 v12, v12, v{SA+r}, v{SA+r+1}')
    for r in range(0, 16, 2):
        k.e(f'v_max3_f32 v13, v13, v{SB+r}, v{SB+r+1}')
    k.e('s_add_u32 s60, s60, 1024')
    k.e(f's_cmp_lt_u32 s60, {WS_K+65536:#x}')
    k.e(f's_cbranch_scc1 {lf}')
    k.e('v_mov_b32 v144, v12')
    k.e('v_mov_b32 v145, v13')
    k.e('s_nop 1')
    k.e('v_permlane32_swap_b32 v12, v144')
    k.e('v_permlane32_swap_b32 v13, v145')
    k.e('s_nop 1')
    k.e('v_max_f32 v12, v12, v144')
    k.e('v_max_f32 v13, v13, v145')
    for r in range(16):
        k.e(f'v_sub_f32 v{NA+r}, 0, v12')
        k.e(f'v_sub_f32 v{NB+r}, 0, v13')
    k.e(f's_branch {lmain}')
    k.e(f'L_{k.name}_end:')
    k.e('s_endpgm')
    return k


def voffW_128(k, dst, pitch_shift):
    k.e('v_lshrrev_b32 v2, 3, v1')
    k.e('v_and_b32 v3, 7, v1')
    k.e('v_lshrrev_b32 v4, 2, v1')
    k.e('v_and_b32 v4, 4, v4')
    k.e('v_xor_b32 v3, v3, v4')
    k.e('v_lshlrev_b32 v3, 4, v3')
    k.e(f'v_lshl_add_u32 v{dst}, v2, {pitch_shift}, v3')

def addrA_128_acc(k, dst, SM, SKH, base):
    k.e('v_lshrrev_b32 v96, 5, v1')
    k.e('v_bfe_u32 v97, v1, 2, 2')
    k.e('v_and_b32 v98, 3, v1')
    k.e('v_bfe_u32 v99, v1, 4, 1')
    k.e('v_lshl_add_u32 v100, v96, 2, v97')
    k.e(f'v_lshrrev_b32 v{dst}, 1, v97')
    k.e(f'v_xor_b32 v{dst}, s{SM}, v{dst}')
    k.e(f'v_lshlrev_b32 v{dst}, 6, v{dst}')
    k.e(f'v_lshl_add_u32 v{dst}, v100, 7, v{dst}')
    k.e(f'v_lshl_add_u32 v{dst}, v99, 5, v{dst}')
    k.e(f'v_lshl_add_u32 v{dst}, v98, 3, v{dst}')
    k.e(f's_lshl_b32 s48, s{SKH}, 11')
    if base: k.e(f's_add_u32 s48, s48, {base}')
    k.e(f'v_add_u32 v{dst}, s48, v{dst}')

def exch8(k, SW, SKH, SC):
    k.e(f's_lshl_b32 s48, s{SW}, 11')
    k.e(f's_add_u32 s48, s48, {SC}')
    k.e('v_add_u32 v2, s48, v14')
    k.e('v_xor_b32 v3, 0x1000, v2')
    l1, l2 = k.label('kh1'), k.label('khj')
    k.e('s_nop 7')
    k.e(f's_cmp_eq_u32 s{SKH}, 1')
    k.e(f's_cbranch_scc1 {l1}')
    k.e('ds_write_b128 v2, v[24:27]')
    k.e('ds_write_b128 v2, v[28:31] offset:1024')
    k.e(f's_branch {l2}')
    k.e(f'{l1}:')
    k.e('ds_write_b128 v2, v[16:19]')
    k.e('ds_write_b128 v2, v[20:23] offset:1024')
    k.e('s_waitcnt lgkmcnt(0)')
    for r in range(8): k.e(f'v_mov_b32 v{16+r}, v{24+r}')
    k.e(f'{l2}:')
    k.e('s_waitcnt lgkmcnt(0)')
    k.e('s_barrier')
    k.e('ds_read_b128 v[48:51], v3')
    k.e('ds_read_b128 v[52:55], v3 offset:1024')

def frag_index(k, dst, SCL, SN, SJ, SM, SKH):
    k.e(f's_lshl_b32 s{dst}, s{SCL}, 1')
    k.e(f's_add_u32 s{dst}, s{dst}, s{SN}')
    k.e(f's_lshl_b32 s{dst}, s{dst}, 5')
    k.e(f's_lshl_b32 s50, s{SJ}, 2')
    k.e(f's_add_u32 s{dst}, s{dst}, s50')
    k.e(f's_lshl_b32 s50, s{SM}, 1')
    k.e(f's_add_u32 s{dst}, s{dst}, s50')
    k.e(f's_add_u32 s{dst}, s{dst}, s{SKH}')
    k.e(f's_lshl_b32 s{dst}, s{dst}, 10')

def row_off(k, vdst, sdst, SCL, SN, SJ, SM, SKH):
    k.e('v_and_b32 v2, 31, v1')
    k.e('v_lshrrev_b32 v3, 5, v1')
    k.e('v_lshlrev_b32 v3, 4, v3')
    k.e(f'v_lshl_add_u32 v{vdst}, v2, 10, v3')
    k.e(f's_lshl_b32 s{sdst}, s{SCL}, 16')
    k.e(f's_lshl_b32 s50, s{SN}, 15')
    k.e(f's_add_u32 s{sdst}, s{sdst}, s50')
    k.e(f's_lshl_b32 s50, s{SJ}, 7')
    k.e(f's_add_u32 s{sdst}, s{sdst}, s50')
    k.e(f's_lshl_b32 s50, s{SM}, 6')
    k.e(f's_add_u32 s{sdst}, s{sdst}, s50')
    k.e(f's_lshl_b32 s50, s{SKH}, 5')
    k.e(f's_add_u32 s{sdst}, s{sdst}, s50')

def gen_k3():
    k = K('oproj_kernel')
    OBASE, WB, SC = 0, 65536, 131072
    SW, SCL, SJ, SM, SN, SKH = 40, 41, 42, 43, 44, 45
    k.e('s_load_dwordx2 s[4:5], s[0:1], 0')
    k.e('s_load_dwordx2 s[6:7], s[0:1], 32')
    k.e('s_load_dwordx2 s[12:13], s[0:1], 96')
    prologue_ids(k, 256, SW)
    cluster_ids(k, SW, SCL, SJ, SM, SN, SKH)
    voffW_128(k, 13, 10)
    k.e('v_lshlrev_b32 v14, 4, v1')
    row_off(k, 12, 56, SCL, SN, SJ, SM, SKH)
    k.e(f's_lshl_b32 s51, s{SW}, 10')
    k.e(f's_lshl_b32 s50, s{SCL}, 16')
    k.e('s_add_u32 s50, s50, s51')
    k.e(f's_add_u32 s57, s50, {WS_O:#x}')
    k.e(f's_lshl_b32 s52, s{SW}, 14')
    k.e(f's_lshl_b32 s48, s{SJ}, 7')
    k.e('s_add_u32 s52, s52, s48')
    k.e(f's_lshl_b32 s53, s{SW}, 11')
    k.e(f's_add_u32 s53, s53, {WB}')
    k.e('s_waitcnt lgkmcnt(0)')
    stamp(k, 0, 2, 12, SW)
    k.srd(16, 4, 2048*1024)
    k.srd(20, 6, 512*1024)
    k.srd(32, 12, WS_END)
    k.e('buffer_load_dwordx4 v[8:11], v12, s[16:19], s56 offen')
    for kc in range(4):
        for u in range(2):
            k.e(f's_add_u32 m0, s51, {kc*8192 + u*32768}')
            k.e(f's_add_u32 s48, s57, {kc*8192 + u*32768}')
            dma(k, 14, 32, 48)
        for u in range(2):
            k.e(f's_add_u32 m0, s53, {kc*16384 + u*1024}')
            k.e(f's_add_u32 s48, s52, {kc*131072 + u*8192}')
            dma(k, 13, 20, 48)
    addrA_128_acc(k, 6, SM, SKH, WB)
    k.e(f's_lshl_b32 s48, s{SN}, 15')
    k.e(f's_lshl_b32 s49, s{SKH}, 10')
    k.e('s_add_u32 s48, s48, s49')
    k.e('v_add_u32 v5, s48, v14')
    for r in range(16, 32): k.e(f'v_mov_b32 v{r}, 0')
    frag_index(k, 55, SCL, SN, SJ, SM, SKH)
    k.e(f's_add_u32 s55, s55, {WS_H:#x}')
    B0, A0 = 48, 64
    for kc in range(4):
        k.e(f's_waitcnt vmcnt({(3-kc)*4})')
        k.e('s_barrier')
        for i in range(4):
            k.e(f'ds_read_b128 {v(B0+4*i,4)}, v5 offset:{(8*kc+2*i)*1024}')
            for t in range(2):
                k.e(f'ds_read_b64_tr_b16 {v(A0+4*i+2*t,2)}, v6 offset:{(16*(8*kc+2*i)+8*t)*128}')
        for i in range(4):
            k.e(f's_waitcnt lgkmcnt({9-3*i})')
            k.e(f'v_mfma_f32_32x32x16_bf16 v[16:31], {v(A0+4*i,4)}, {v(B0+4*i,4)}, v[16:31]')
    stamp(k, 1, 2, 12, SW)
    k.e('v_permlane32_swap_b32 v8, v10')
    k.e('v_permlane32_swap_b32 v9, v11')
    exch8(k, SW, SKH, SC)
    for r in range(4):
        k.e(f'v_lshlrev_b32 v{56+2*r}, 16, v{8+r}')
        k.e(f'v_and_b32 v{57+2*r}, 0xffff0000, v{8+r}')
    for r in range(8): k.e(f'v_add_f32 v{16+r}, v{16+r}, v{56+r}')
    k.e('s_waitcnt lgkmcnt(0)')
    for r in range(8): k.e(f'v_add_f32 v{16+r}, v{16+r}, v{48+r}')
    for r in range(4): k.e(f'v_cvt_pk_bf16_f32 v{24+r}, v{16+2*r}, v{17+2*r}')
    k.e('buffer_store_dwordx4 v[24:27], v14, s[32:35], s55 offen')
    stamp(k, 2, 2, 12, SW)
    k.e(f'L_{k.name}_end:')
    k.e('s_endpgm')
    return k

GC0 = -2.0 * math.log2(math.e) * math.sqrt(2.0 / math.pi)
GC1 = GC0 * 0.044715
def gen_k4():
    k = K('ffn1_kernel')
    SW, STG, SG, SN, SKH = 40, 41, 42, 44, 45
    SC_X, SC_ST, SC_CS = 98304, 147456, 149504
    ACC, BF, A0 = 16, 64, 128
    BIAS = 152
    k.e('s_load_dwordx4 s[4:7], s[0:1], 48')
    k.e('s_load_dwordx2 s[12:13], s[0:1], 96')
    prologue_ids(k, 240, SW)
    k.e('s_and_b32 s46, s2, 7')
    k.e('s_lshr_b32 s47, s2, 3')
    k.e('s_cmp_ge_u32 s47, 15')
    k.e('s_cselect_b32 s48, 1, 0')
    k.e('s_cselect_b32 s49, 15, 0')
    k.e(f's_sub_u32 s{SG}, s47, s49')
    k.e('s_lshl_b32 s46, s46, 1')
    k.e(f's_add_u32 s{STG}, s46, s48')
    k.e(f's_and_b32 s{SN}, s{SW}, 3')
    k.e(f's_lshr_b32 s{SKH}, s{SW}, 2')
    k.e('v_lshlrev_b32 v14, 4, v1')
    k.e('s_movk_i32 s48, 171')
    k.e('s_movk_i32 s49, 2752')
    for t in range(3):
        k.e(f'v_add_u32 v2, {64*t}, v1')
        k.e('v_mul_u32_u24 v3, s48, v2')
        k.e('v_lshrrev_b32 v3, 11, v3')
        k.e('v_mul_u32_u24 v4, 12, v3')
        k.e('v_sub_u32 v4, v2, v4')
        k.e('v_lshlrev_b32 v4, 4, v4')
        k.e(f'v_mad_u32_u24 v{10+t}, v3, s49, v4')
    k.e(f's_cmp_eq_u32 s{SN}, 3')
    k.e(f's_cselect_b32 s60, 0, s{SN}')
    k.e('s_add_u32 s61, s60, 1')
    k.e('s_cmp_eq_u32 s61, 3')
    k.e('s_cselect_b32 s61, 0, s61')
    k.e('s_add_u32 s62, s61, 1')
    k.e('s_cmp_eq_u32 s62, 3')
    k.e('s_cselect_b32 s62, 0, s62')
    k.e('s_lshl_b32 s63, s60, 1')
    k.e('s_lshl_b32 s64, s61, 1')
    k.e('s_lshl_b32 s65, s62, 1')
    k.e('s_add_u32 s66, s63, 1')
    k.e('s_add_u32 s67, s64, 1')
    k.e('s_add_u32 s68, s65, 1')
    k.e(f's_cmp_eq_u32 s{SKH}, 0')
    k.e('s_cselect_b32 s70, s63, s67')
    k.e('s_cselect_b32 s71, s66, s65')
    k.e('s_cselect_b32 s72, s64, s68')
    k.e(f's_mul_i32 s69, s{SG}, 6')
    k.e('v_lshrrev_b32 v96, 5, v1')
    k.e('v_lshlrev_b32 v13, 3, v96')
    k.e(f's_lshl_b32 s55, s{STG}, 2')
    k.e(f's_add_u32 s55, s55, s{SN}')
    k.e('s_lshl_b32 s56, s55, 5')
    k.e(f's_add_u32 s56, s56, s{SKH}')
    k.e('s_lshl_b32 s56, s56, 10')
    k.e(f's_add_u32 s56, s56, {WS_H:#x}')
    k.e(f's_mul_i32 s52, s{SW}, {16*2752}')
    k.e(f's_mul_i32 s48, s{SG}, 192')
    k.e('s_add_u32 s52, s52, s48')
    k.e(f's_mul_i32 s53, s{SW}, 3072')
    k.e('s_waitcnt lgkmcnt(0)')
    stamp(k, 0, 3, 12, SW)
    k.srd(20, 4, 512*2752)
    k.srd(24, 6, 1376*2)
    k.srd(32, 12, WS_END)
    for e in range(3):
        k.e(f's_add_u32 s48, s69, s{70+e}')
        k.e('s_lshl_b32 s48, s48, 5')
        k.e(f'buffer_load_dwordx2 {v(BIAS+4*e,2)}, v13, s[24:27], s48 offen')
        k.e(f'buffer_load_dwordx2 {v(BIAS+4*e+2,2)}, v13, s[24:27], s48 offen offset:16')
    for st in range(4):
        for t in range(3):
            k.e(f's_add_u32 m0, s53, {st*8*3072 + t*1024}')
            k.e(f's_add_u32 s48, s52, {st*128*2752}')
            dma(k, 10+t, 20, 48)
        for i in range(4*st, 4*st+4):
            k.e(f's_add_u32 s48, s56, {(i//2)*4096}')
            k.e(f'buffer_load_dwordx4 {v(BF+4*i,4)}, v14, s[32:35], s48 offen offset:{(i%2)*2048}')
    k.e('v_lshrrev_b32 v2, 5, v1')
    k.e('v_bfe_u32 v3, v1, 2, 2')
    k.e('v_lshl_add_u32 v2, v2, 2, v3')
    k.e('v_mul_u32_u24 v2, 0xc0, v2')
    k.e('v_bfe_u32 v3, v1, 4, 1')
    k.e('v_lshl_add_u32 v2, v3, 5, v2')
    k.e('v_and_b32 v3, 3, v1')
    k.e('v_lshl_add_u32 v2, v3, 3, v2')
    k.e(f's_mul_i32 s48, s{SKH}, 3072')
    for sl in range(3):
        k.e(f's_lshl_b32 s49, s{60+sl}, 6')
        k.e('s_add_u32 s49, s49, s48')
        k.e(f'v_add_u32 v{4+sl}, s49, v2')
        k.e(f'v_add_u32 v{7+sl}, 0xc000, v{4+sl}')
    for r in range(ACC, ACC+48): k.e(f'v_mov_b32 v{r}, 0')
    for r in (164, 165, 166): k.e(f'v_mov_b32 v{r}, 0')
    k.e(f's_mov_b32 s54, {ONES_BF:#x}')
    def reads(i):
        base = 4 if i < 8 else 7
        off = (2*(i % 8))*3072
        for sl in range(3):
            for t in range(2):
                k.e(f'ds_read_b64_tr_b16 {v(A0+12*(i%2)+4*sl+2*t,2)}, v{base+sl} offset:{off + t*1536}')
    def proc(i):
        a = A0 + 12*(i % 2)
        b = BF + 4*i
        for sl in range(3):
            k.e(f'v_mfma_f32_32x32x16_bf16 {v(ACC+16*sl,16)}, {v(a+4*sl,4)}, {v(b,4)}, {v(ACC+16*sl,16)}')
            rr = [(0, 1), (2,), (3,)][sl]
            for r in rr:
                k.e(f'v_dot2c_f32_bf16 v164, s54, v{b+r}')
                k.e(f'v_dot2c_f32_bf16 v165, v{b+r}, v{b+r}')
                k.e(f'v_dot2c_f32_bf16 v166, s54, v{a+r}')
    for st in range(4):
        k.e(f's_waitcnt vmcnt({(3-st)*7})')
        k.e('s_barrier')
        reads(4*st)
        for i in range(4*st, 4*st+4):
            if i < 4*st+3:
                reads(i+1)
                k.e('s_waitcnt lgkmcnt(6)')
            else:
                k.e('s_waitcnt lgkmcnt(0)')
            proc(i)
    stamp(k, 1, 3, 12, SW)
    k.e('s_nop 3')
    k.e('v_mov_b32 v167, v166')
    k.e('s_nop 1')
    k.e('v_permlane32_swap_b32 v164, v165')
    k.e('v_permlane32_swap_b32 v166, v167')
    k.e(f's_mul_i32 s48, s{SW}, 6144')
    k.e(f's_xor_b32 s49, s{SW}, 4')
    k.e('s_mul_i32 s49, s49, 6144')
    k.e(f's_add_u32 s48, s48, {SC_X}')
    k.e(f's_add_u32 s49, s49, {SC_X}')
    k.e('v_add_f32 v164, v164, v165')
    k.e('v_add_f32 v166, v166, v167')
    k.e('v_add_u32 v2, s48, v14')
    k.e('v_add_u32 v3, s49, v14')
    k.e(f's_lshl_b32 s48, s{SW}, 8')
    k.e(f's_add_u32 s48, s48, {SC_ST}')
    k.e('v_lshlrev_b32 v4, 2, v1')
    k.e('v_add_u32 v4, s48, v4')
    k.e('ds_write_b32 v4, v164')
    k.e('v_and_b32 v5, 31, v1')
    k.e('v_lshlrev_b32 v5, 2, v5')
    k.e(f's_lshl_b32 s49, s{SKH}, 9')
    k.e('s_lshl_b32 s50, s60, 7')
    k.e('s_add_u32 s49, s49, s50')
    k.e(f's_add_u32 s49, s49, {SC_CS}')
    k.e('v_add_u32 v6, s49, v5')
    k.e('ds_write_b32 v6, v166')
    l1, l2 = k.label('kh1'), k.label('khj')
    k.e(f's_cmp_eq_u32 s{SKH}, 1')
    k.e(f's_cbranch_scc1 {l1}')
    for q in range(6): k.e(f'ds_write_b128 v2, {v(ACC+24+4*q,4)} offset:{q*1024}')
    k.e(f's_branch {l2}')
    k.e(f'{l1}:')
    for q in range(6): k.e(f'ds_write_b128 v2, {v(ACC+4*q,4)} offset:{q*1024}')
    k.e('s_waitcnt lgkmcnt(0)')
    for r in range(24): k.e(f'v_mov_b32 v{ACC+r}, v{ACC+24+r}')
    k.e(f'{l2}:')
    k.e('s_waitcnt lgkmcnt(0)')
    k.e('s_barrier')
    T = 64
    k.e('v_add_u32 v4, s48, v5')
    k.e('v_xor_b32 v6, 0x400, v4')
    k.e('ds_read_b32 v164, v4')
    k.e('ds_read_b32 v165, v4 offset:128')
    k.e('ds_read_b32 v166, v6')
    k.e('ds_read_b32 v167, v6 offset:128')
    for q in range(6): k.e(f'ds_read_b128 {v(ACC+24+4*q,4)}, v3 offset:{q*1024}')
    k.e('v_lshlrev_b32 v7, 1, v13')
    k.e('s_waitcnt lgkmcnt(6)')
    k.e('v_add_f32 v164, v164, v166')
    k.e('v_add_f32 v165, v165, v167')
    k.e(f'v_mul_f32 v164, {f2u(1/512):#x}, v164')
    k.e(f'v_mul_f32 v165, {f2u(1/512):#x}, v165')
    k.e('v_fma_f32 v165, -v164, v164, v165')
    k.e('v_max_f32 v165, 0, v165')
    k.e(f'v_add_f32 v165, {f2u(EPS):#x}, v165')
    k.e('v_rsq_f32 v165, v165')
    for e in range(3):
        k.e(f's_lshl_b32 s48, s{70+e}, 6')
        k.e(f's_add_u32 s48, s48, {SC_CS}')
        k.e(f'v_add_u32 v8, s48, v7')
        if e == 0: k.e('s_waitcnt lgkmcnt(2)')
        k.e(f'ds_read_b128 {v(T+16*e,4)}, v8')
        k.e(f'ds_read_b128 {v(T+16*e+4,4)}, v8 offset:32')
        k.e(f'ds_read_b128 {v(T+16*e+8,4)}, v8 offset:512')
        k.e(f'ds_read_b128 {v(T+16*e+12,4)}, v8 offset:544')
    k.e('s_waitcnt lgkmcnt(12)')
    for r in range(24): k.e(f'v_add_f32 v{ACC+r}, v{ACC+r}, v{ACC+24+r}')
    k.e(f's_mov_b32 s58, {f2u(GC0):#x}')
    k.e(f's_mov_b32 s59, {f2u(GC1):#x}')
    k.e('v_mov_b32 v9, s58')
    k.e(f's_mul_i32 s57, s55, 86')
    k.e('s_add_u32 s57, s57, s69')
    for e in range(3):
        k.e(f's_waitcnt lgkmcnt({8-4*e})')
        c = T + 16*e; u = ACC + 8*e; tmp = ACC + 24
        for r in range(8): k.e(f'v_add_f32 v{c+r}, v{c+r}, v{c+8+r}')
        for r in range(4):
            k.e(f'v_lshlrev_b32 v{c+8+2*r}, 16, v{BIAS+4*e+r}')
            k.e(f'v_and_b32 v{c+9+2*r}, 0xffff0000, v{BIAS+4*e+r}')
        for r in range(8): k.e(f'v_fma_f32 v{u+r}, -v164, v{c+r}, v{u+r}')
        for r in range(8): k.e(f'v_fma_f32 v{u+r}, v{u+r}, v165, v{c+8+r}')
        for r in range(8): k.e(f'v_mul_f32 v{tmp+r}, v{u+r}, v{u+r}')
        for r in range(8): k.e(f'v_fma_f32 v{tmp+r}, v{tmp+r}, s59, v9')
        for r in range(8): k.e(f'v_mul_f32 v{tmp+r}, v{tmp+r}, v{u+r}')
        for r in range(8): k.e(f'v_exp_f32 v{tmp+r}, v{tmp+r}')
        for r in range(8): k.e(f'v_add_f32 v{tmp+r}, 1.0, v{tmp+r}')
        for r in range(8): k.e(f'v_rcp_f32 v{tmp+r}, v{tmp+r}')
        for r in range(8): k.e(f'v_mul_f32 v{u+r}, v{u+r}, v{tmp+r}')
        for r in range(4): k.e(f'v_cvt_pk_bf16_f32 v{168+4*e+r}, v{u+2*r}, v{u+2*r+1}')
        lsk = k.label('skip')
        k.e(f's_add_u32 s48, s69, s{70+e}')
        k.e('s_cmp_ge_u32 s48, 86')
        k.e(f's_cbranch_scc1 {lsk}')
        k.e(f's_add_u32 s48, s57, s{70+e}')
        k.e('s_lshl_b32 s48, s48, 10')
        k.e(f's_add_u32 s48, s48, {WS_F:#x}')
        k.e(f'buffer_store_dwordx4 {v(168+4*e,4)}, v14, s[32:35], s48 offen')
        k.e(f'{lsk}:')
    stamp(k, 2, 3, 12, SW)
    k.e(f'L_{k.name}_end:')
    k.e('s_endpgm')
    return k

def gen_k5():
    k = K('ffn2_kernel')
    SC = 131072
    SW, SCL, SJ, SM, SN, SKH = 40, 41, 42, 43, 44, 45
    k.e('s_load_dwordx4 s[4:7], s[0:1], 64')
    k.e('s_load_dwordx2 s[8:9], s[0:1], 80')
    k.e('s_load_dwordx2 s[12:13], s[0:1], 96')
    prologue_ids(k, 256, SW)
    cluster_ids(k, SW, SCL, SJ, SM, SN, SKH)
    voffW_128(k, 13, 10)
    k.e('v_lshlrev_b32 v14, 4, v1')
    row_off(k, 12, 56, SCL, SN, SJ, SM, SKH)
    frag_index(k, 55, SCL, SN, SJ, SM, SKH)
    k.e(f's_add_u32 s55, s55, {WS_H:#x}')
    k.e('v_lshrrev_b32 v15, 5, v1')
    k.e('v_lshlrev_b32 v15, 3, v15')
    k.e('s_and_b32 s58, s56, 0x3ff')
    k.e(f's_mul_i32 s57, s{SCL}, {2*86*1024}')
    k.e(f's_lshl_b32 s51, s{SW}, 10')
    k.e('s_add_u32 s57, s57, s51')
    k.e(f's_add_u32 s57, s57, {WS_F:#x}')
    k.e('s_add_u32 s51, s51, 16384')
    k.e(f's_lshl_b32 s52, s{SW}, 14')
    k.e(f's_lshl_b32 s48, s{SJ}, 7')
    k.e('s_add_u32 s52, s52, s48')
    k.e(f's_lshl_b32 s53, s{SW}, 11')
    k.e('s_waitcnt lgkmcnt(0)')
    stamp(k, 0, 4, 12, SW)
    k.srd(16, 8, 2048*1024)
    k.srd(20, 4, 1376*1024)
    k.srd(24, 6, 1024)
    k.srd(32, 12, WS_END)
    k.e('buffer_load_dwordx4 v[8:11], v14, s[32:35], s55 offen')
    k.e('buffer_load_dwordx2 v[32:33], v15, s[24:27], s58 offen')
    k.e('buffer_load_dwordx2 v[34:35], v15, s[24:27], s58 offen offset:16')
    def issue(c):
        sl = c % 4
        for u in range(2):
            k.e(f's_add_u32 m0, s51, {sl*32768 + u*8192}')
            k.e(f's_add_u32 s48, s57, {c*8192 + u*86*1024}')
            dma(k, 14, 32, 48)
        for u in range(2):
            k.e(f's_add_u32 m0, s53, {sl*32768 + u*1024}')
            k.e(f's_add_u32 s48, s52, {c*131072 + u*8192}')
            dma(k, 13, 20, 48)
    for c in range(4): issue(c)
    addrA_128_acc(k, 6, SM, SKH, 0)
    k.e('v_add_u32 v7, 0x10000, v6')
    k.e(f's_lshl_b32 s48, s{SN}, 13')
    k.e(f's_lshl_b32 s49, s{SKH}, 10')
    k.e('s_add_u32 s48, s48, s49')
    k.e('s_add_u32 s48, s48, 16384')
    k.e('v_add_u32 v4, s48, v14')
    k.e('v_add_u32 v5, 0x10000, v4')
    for r in range(16, 32): k.e(f'v_mov_b32 v{r}, 0')
    B0, A0 = 48, 64
    for c in range(11):
        n_after = (3 if c == 0 else min(c+2, 10) - c)
        k.e(f's_waitcnt vmcnt({4*n_after})')
        k.e('s_barrier')
        sl = c % 4
        ni = 4 if c < 10 else 3
        vb = 4 if sl < 2 else 5
        va = 6 if sl < 2 else 7
        so = (sl % 2)*32768
        for i in range(ni):
            k.e(f'ds_read_b128 {v(B0+4*i,4)}, v{vb} offset:{so + 2*i*1024}')
            for t in range(2):
                k.e(f'ds_read_b64_tr_b16 {v(A0+4*i+2*t,2)}, v{va} offset:{so + (16*2*i+8*t)*128}')
        if c >= 1 and c+3 <= 10: issue(c+3)
        for i in range(ni):
            k.e(f's_waitcnt lgkmcnt({3*(ni-1-i)})')
            k.e(f'v_mfma_f32_32x32x16_bf16 v[16:31], {v(A0+4*i,4)}, {v(B0+4*i,4)}, v[16:31]')
    stamp(k, 1, 4, 12, SW)
    k.e('s_nop 3')
    exch8(k, SW, SKH, SC)
    for r in range(4):
        k.e(f'v_lshlrev_b32 v{56+2*r}, 16, v{8+r}')
        k.e(f'v_and_b32 v{57+2*r}, 0xffff0000, v{8+r}')
        k.e(f'v_lshlrev_b32 v{64+2*r}, 16, v{32+r}')
        k.e(f'v_and_b32 v{65+2*r}, 0xffff0000, v{32+r}')
    for r in range(8): k.e(f'v_add_f32 v{56+r}, v{56+r}, v{64+r}')
    for r in range(8): k.e(f'v_add_f32 v{16+r}, v{16+r}, v{56+r}')
    k.e('s_waitcnt lgkmcnt(0)')
    for r in range(8): k.e(f'v_add_f32 v{16+r}, v{16+r}, v{48+r}')
    for r in range(4): k.e(f'v_cvt_pk_bf16_f32 v{24+r}, v{16+2*r}, v{17+2*r}')
    k.e('s_nop 1')
    k.e('v_permlane32_swap_b32 v24, v26')
    k.e('v_permlane32_swap_b32 v25, v27')
    k.e('buffer_store_dwordx4 v[24:27], v12, s[16:19], s56 offen')
    stamp(k, 2, 4, 12, SW)
    k.e(f'L_{k.name}_end:')
    k.e('s_endpgm')
    return k

if __name__ == '__main__':
    hdr = open('header.txt').read()
    if len(sys.argv) > 2 and sys.argv[2] == 'stamp': STAMP = True
    ks = [gen_k1(), gen_k2(), gen_k3(), gen_k4(), gen_k5()]
    launches = [('qkv_kernel', 256, 512, 163840), ('attn_kernel', 256, 512, 163840), ('oproj_kernel', 256, 512, 147456),
                ('ffn1_kernel', 240, 512, 151552), ('ffn2_kernel', 256, 512, 147456)]
    open(sys.argv[1], 'w').write(emit_file(hdr, launches, ks))
```

```python
import sys, math, struct, os
from asmlib import *

NAME = 'sequential_preLN__grouped_kv_mqa__dense_activation_gelu__prompt'
def f2u(x): return struct.unpack('<I', struct.pack('<f', x))[0]
OPT = os.environ.get('OPT', '').split(',')
STAMP = 'stamp' in OPT

WS_K   = 0x000000
WS_V   = 0x010000
WS_MX  = 0x020000
WS_FL  = 0x028000
WS_S2  = 0x040000
WS_O   = 0x100000
WS_H   = 0x300000
WS_F   = 0x500000
WS_END = 0x500000 + 64*86*1024
WS_ST  = 0xE00000

QS = 0.25 * math.log2(math.e)
EPS = 1e-5
ONES_BF = 0x3F803F80
TSAFE = 50.0
GC0 = -2.0 * math.log2(math.e) * math.sqrt(2.0 / math.pi)
GC1 = GC0 * 0.044715
SPIN_LIMIT = 1 << 20

P_X, P_WQ, P_WK, P_WV, P_WO, P_W1, P_B1, P_W2, P_B2, P_OUT, P_DBG, P_WS = 4, 6, 8, 10, 12, 16, 18, 20, 22, 24, 26, 28
R_WS, R_A, R_B, R_C = 32, 36, 40, 44
SW, SCL, SJ, SM, SN, SKH, SFAST, SONE = 50, 51, 52, 53, 54, 55, 56, 57
STILE, SFRAG, SROW, SFL, SSPIN = 58, 59, 60, 61, 62
T0, T1, T2, T3, T4, T5, T6, T7 = 64, 65, 66, 67, 68, 69, 70, 71
SMASK = 72
VL, VL16, VH = 1, 14, 15

k = K(NAME + '_kernel')
LEND = 'L_end'
stamp_n = [0]
def stamp():
    if not STAMP: return
    idx = stamp_n[0]; stamp_n[0] += 1
    lab = k.label('st')
    k.e(f's_and_b32 s96, s{SW}, 3')
    k.e(f's_cmp_lg_u32 s96, 0')
    k.e(f's_cbranch_scc1 {lab}')
    k.e('s_memrealtime s[90:91]')
    k.e('s_memtime s[94:95]')
    k.e('s_waitcnt lgkmcnt(0)')
    k.e(f'v_writelane_b32 v126, s90, {idx}')
    k.e(f'v_writelane_b32 v127, s94, {idx}')
    k.e(f'{lab}:')
def stamp_flush():
    if not STAMP: return
    lab = k.label('st')
    k.e(f's_and_b32 s96, s{SW}, 3')
    k.e(f's_cmp_lg_u32 s96, 0')
    k.e(f's_cbranch_scc1 {lab}')
    k.e('s_mov_b64 exec, -1')
    k.e(f's_lshl_b32 s92, s2, 10')
    k.e(f's_lshl_b32 s96, s{SW}, 7')
    k.e('s_add_u32 s92, s92, s96')
    k.e(f's_add_u32 s92, s92, {WS_ST}')
    k.e(f'v_lshlrev_b32 v2, 3, v{VL}')
    k.e('v_add_u32 v2, s92, v2')
    k.e(f'global_store_dwordx2 v2, v[126:127], s[{P_WS}:{P_WS+1}]')
    k.e(f'{lab}:')

def dma(voff, srd, soff, sc=''):
    k.e(f'buffer_load_dwordx4 v{voff}, s[{srd}:{srd+3}], s{soff} offen {sc} lds')
def mf(d, a, b, c=None, at='v', bt='v'):
    A = v(a, 4) if at == 'v' else a_(a, 4)
    B = v(b, 4) if bt == 'v' else a_(b, 4)
    C = '0' if c is None else v(c, 16)
    k.e(f'v_mfma_f32_32x32x16_bf16 {v(d,16)}, {A}, {B}, {C}')
def pub_store(ins):
    l1, l2 = k.label('slow'), k.label('pj')
    k.e(f's_cmp_eq_u32 s{SFAST}, 0')
    k.e(f's_cbranch_scc1 {l1}')
    for i in ins: k.e(i)
    k.e(f's_branch {l2}')
    k.e(f'{l1}:')
    for i in ins: k.e(i + ' sc1')
    k.e(f'{l2}:')
def set_flag(phase):
    k.e(f's_lshl_b32 s{T0}, s{SJ}, 5')
    k.e(f's_lshl_b32 s{T1}, s{SW}, 2')
    k.e(f's_add_u32 s{T0}, s{T0}, s{T1}')
    k.e(f's_add_u32 s{T0}, s{T0}, s{SFL}')
    k.e('v_mov_b32 v2, 0')
    k.e('v_mov_b32 v3, 1')
    k.e('s_waitcnt vmcnt(0)')
    k.e('s_mov_b64 exec, 1')
    pub_store([f'buffer_store_dword v3, v2, s[{R_WS}:{R_WS+3}], s{T0} offen offset:{phase*256}'])
    k.e('s_mov_b64 exec, -1')
def poll_flags(phase):
    lp, ld = k.label('poll'), k.label('polld')
    k.e(f'v_lshlrev_b32 v2, 2, v{VL}')
    k.e(f'{lp}:')
    k.e(f'buffer_load_dword v3, v2, s[{R_WS}:{R_WS+3}], s{SFL} offen offset:{phase*256} sc1')
    k.e(f's_sub_u32 s{SSPIN}, s{SSPIN}, 1')
    k.e(f's_cbranch_scc1 {LEND}')
    k.e('s_waitcnt vmcnt(0)')
    k.e('v_cmp_ne_u32 vcc, 1, v3')
    k.e('s_nop 1')
    k.e('s_cmp_lg_u64 vcc, 0')
    k.e(f's_cbranch_scc1 {lp}')
def wave_umax(vr, sd, st):
    for sh in (8, 4, 2, 1):
        k.e('s_nop 1')
        k.e(f'v_max_u32_dpp v{vr}, v{vr}, v{vr} row_ror:{sh} row_mask:0xf bank_mask:0xf')
    k.e('s_nop 1')
    k.e(f'v_readlane_b32 s{sd}, v{vr}, 0')
    k.e(f'v_readlane_b32 s{st}, v{vr}, 16')
    k.e(f'v_readlane_b32 s{st+1}, v{vr}, 32')
    k.e(f'v_readlane_b32 s{st+2}, v{vr}, 48')
    k.e('s_nop 3')
    k.e(f's_max_u32 s{sd}, s{sd}, s{st}')
    k.e(f's_max_u32 s{st+1}, s{st+1}, s{st+2}')
    k.e(f's_max_u32 s{sd}, s{sd}, s{st+1}')
def mean_rstd(vs, vq):
    k.e(f'v_mul_f32 v{vs}, {f2u(1/512):#x}, v{vs}')
    k.e(f'v_mul_f32 v{vq}, {f2u(1/512):#x}, v{vq}')
    k.e(f'v_fma_f32 v{vq}, -v{vs}, v{vs}, v{vq}')
    k.e(f'v_max_f32 v{vq}, 0, v{vq}')
    k.e(f'v_add_f32 v{vq}, {f2u(EPS):#x}, v{vq}')
    k.e(f'v_rsq_f32 v{vq}, v{vq}')
    k.e('s_nop 0')
def voffW_128(dst):
    k.e(f'v_lshrrev_b32 v2, 3, v{VL}')
    k.e(f'v_and_b32 v3, 7, v{VL}')
    k.e(f'v_lshrrev_b32 v4, 2, v{VL}')
    k.e('v_and_b32 v4, 4, v4')
    k.e('v_xor_b32 v3, v3, v4')
    k.e('v_lshlrev_b32 v3, 4, v3')
    k.e(f'v_lshl_add_u32 v{dst}, v2, 10, v3')
def addrA_128(dst, hshift, base_sreg):
    k.e(f'v_bfe_u32 v2, v{VL}, 2, 2')
    k.e(f'v_lshl_add_u32 v3, v{VH}, {hshift}, v2')
    k.e('v_lshrrev_b32 v2, 1, v2')
    k.e(f'v_xor_b32 v2, s{SM}, v2')
    k.e('v_lshlrev_b32 v2, 6, v2')
    k.e('v_lshl_add_u32 v2, v3, 7, v2')
    k.e(f'v_bfe_u32 v3, v{VL}, 4, 1')
    k.e('v_lshl_add_u32 v2, v3, 5, v2')
    k.e(f'v_and_b32 v3, 3, v{VL}')
    k.e('v_lshl_add_u32 v2, v3, 3, v2')
    k.e(f'v_add_u32 v{dst}, s{base_sreg}, v2')

k.e('s_load_dwordx16 s[4:19], s[0:1], 0')
k.e('s_load_dwordx8 s[20:27], s[0:1], 64')
k.e('s_load_dwordx2 s[28:29], s[0:1], 96')
k.e('s_cmp_ge_u32 s2, 256')
k.e(f's_cbranch_scc1 {LEND}')
k.e('v_lshrrev_b32 v2, 6, v0')
k.e(f'v_and_b32 v{VL}, 63, v0')
k.e(f'v_readfirstlane_b32 s{SW}, v2')
k.e(f's_and_b32 s{T0}, s2, 7')
k.e(f's_lshr_b32 s{T1}, s2, 3')
k.e(f's_and_b32 s{SJ}, s{T1}, 7')
k.e(f's_lshr_b32 s{T1}, s{T1}, 3')
k.e(f's_lshl_b32 s{T0}, s{T0}, 2')
k.e(f's_add_u32 s{SCL}, s{T0}, s{T1}')
k.e(f's_and_b32 s{SM}, s{SW}, 1')
k.e(f's_lshr_b32 s{SN}, s{SW}, 2')
k.e(f's_bfe_u32 s{SKH}, s{SW}, 0x10001')
k.e(f's_mov_b32 s{SONE}, {ONES_BF:#x}')
k.e(f's_mov_b32 s{SSPIN}, {SPIN_LIMIT}')
k.e(f'v_lshlrev_b32 v{VL16}, 4, v{VL}')
k.e(f'v_lshrrev_b32 v{VH}, 5, v{VL}')
if STAMP:
    k.e('v_mov_b32 v126, -1'); k.e('v_mov_b32 v127, -1')
XB, WB, KVB = 0, 65536, 131072
k.e(f's_and_b32 s{T2}, s{SW}, 3')
k.e(f's_lshl_b32 s{T1}, s{T2}, 2')
k.e(f'v_lshrrev_b32 v2, 4, v{VL}')
k.e(f'v_add_u32 v2, s{T1}, v2')
k.e(f'v_and_b32 v3, 15, v{VL}')
k.e('v_xor_b32 v3, v3, v2')
k.e('v_lshlrev_b32 v3, 4, v3')
k.e('v_lshl_add_u32 v12, v2, 10, v3')
voffW_128(13)
k.e(f's_lshl_b32 s{SFL}, s{SCL}, 10')
k.e(f's_add_u32 s{SFL}, s{SFL}, {WS_FL:#x}')
k.e(f's_lshl_b32 s{T0}, s{SCL}, 1')
k.e(f's_add_u32 s{T0}, s{T0}, s{SN}')
k.e(f's_lshl_b32 s{T1}, s{SJ}, 2')
k.e(f's_lshl_b32 s{T3}, s{SM}, 1')
k.e(f's_add_u32 s{T1}, s{T1}, s{T3}')
k.e(f's_add_u32 s{T1}, s{T1}, s{SKH}')
k.e(f's_lshl_b32 s{SFRAG}, s{T0}, 5')
k.e(f's_add_u32 s{SFRAG}, s{SFRAG}, s{T1}')
k.e(f's_lshl_b32 s{SFRAG}, s{SFRAG}, 10')
k.e(f's_lshl_b32 s{SROW}, s{T0}, 15')
k.e(f's_lshl_b32 s{T1}, s{T1}, 5')
k.e(f's_add_u32 s{SROW}, s{SROW}, s{T1}')
k.e('s_waitcnt lgkmcnt(0)')
stamp()
k.srd(R_WS, P_WS, WS_END)
k.srd(R_A, P_X, 2048*1024)
k.srd(R_B, P_WQ, 512*1024)
lz = k.label('noz')
k.e(f's_cmp_lg_u32 s{SW}, 7')
k.e(f's_cbranch_scc1 {lz}')
k.e(f'v_lshrrev_b32 v2, 3, v{VL}')
k.e(f'v_and_b32 v3, 7, v{VL}')
k.e('v_lshlrev_b32 v3, 2, v3')
k.e('v_lshl_add_u32 v2, v2, 8, v3')
k.e('v_mov_b32 v3, 0')
k.e(f's_lshl_b32 s{T0}, s{SJ}, 5')
k.e(f's_add_u32 s{T0}, s{T0}, s{SFL}')
k.e('s_mov_b64 exec, 0xffffff')
k.e(f'buffer_store_dword v3, v2, s[{R_WS}:{R_WS+3}], s{T0} offen sc1')
k.e('s_mov_b64 exec, -1')
k.e(f'{lz}:')
lnokv = k.label('nokv')
k.e(f's_cmp_ge_u32 s{SJ}, 2')
k.e(f's_cbranch_scc1 {lnokv}')
k.e(f's_cmp_eq_u32 s{SN}, 0')
k.e(f's_cselect_b32 s{R_C}, s{P_WK}, s{P_WV}')
k.e(f's_cselect_b32 s{R_C+1}, s{P_WK+1}, s{P_WV+1}')
k.e(f's_and_b32 s{R_C+1}, s{R_C+1}, 0xffff')
k.e(f's_mov_b32 s{R_C+2}, 0x4000')
k.e(f's_mov_b32 s{R_C+3}, 0x20000')
k.e(f's_lshl_b32 s{T0}, s{T2}, 10')
k.e(f's_lshl_b32 s{T1}, s{SN}, 14')
k.e(f's_add_u32 s{T1}, s{T1}, s{T0}')
k.e(f's_add_u32 s{T1}, s{T1}, {KVB}')
for kc in range(4):
    k.e(f's_add_u32 m0, s{T1}, {kc*4096}')
    k.e(f's_add_u32 s{T3}, s{T0}, {kc*4096}')
    dma(VL16, R_C, T3)
k.e(f'{lnokv}:')
k.e(f's_lshl_b32 s{T0}, s{SCL}, 16')
k.e(f's_lshl_b32 s{T1}, s{SN}, 14')
k.e(f's_add_u32 s{T0}, s{T0}, s{T1}')
k.e(f's_lshl_b32 s{T1}, s{SN}, 12')
k.e(f's_lshl_b32 s{T3}, s{T2}, 10')
k.e(f's_add_u32 s{T1}, s{T1}, s{T3}')
for kc in range(4):
    for u in range(2):
        k.e(f's_add_u32 m0, s{T1}, {XB + kc*16384 + u*8192}')
        k.e(f's_add_u32 s{T3}, s{T0}, {kc*256 + u*32768}')
        dma(12, R_A, T3)
def wslab_issue(srd, ldsbase, nchunk=4, c0=0):
    k.e(f's_lshl_b32 s{T0}, s{SW}, 14')
    k.e(f's_lshl_b32 s{T3}, s{SJ}, 7')
    k.e(f's_add_u32 s{T0}, s{T0}, s{T3}')
    k.e(f's_lshl_b32 s{T1}, s{SW}, 11')
    for kc in range(nchunk):
        for u in range(2):
            k.e(f's_add_u32 m0, s{T1}, {ldsbase + kc*16384 + u*1024}')
            k.e(f's_add_u32 s{T3}, s{T0}, {(c0+kc)*131072 + u*8192}')
            dma(13, srd, T3)
wslab_issue(R_B, WB)
k.e(f's_lshl_b32 s{T0}, s{SKH}, 1')
k.e(f'v_add_u32 v2, s{T0}, v{VH}')
k.e(f'v_and_b32 v3, 15, v{VL}')
k.e('v_xor_b32 v2, v2, v3')
k.e('v_lshlrev_b32 v2, 4, v2')
k.e(f'v_and_b32 v3, 31, v{VL}')
k.e('v_lshl_add_u32 v2, v3, 8, v2')
k.e(f's_lshl_b32 s{T0}, s{SN}, 13')
k.e(f's_lshl_b32 s{T1}, s{SM}, 15')
k.e(f's_add_u32 s{T0}, s{T0}, s{T1}')
k.e(f'v_add_u32 v5, s{T0}, v2')
k.e('v_xor_b32 v6, 64, v5')
k.e('v_xor_b32 v7, 0x80, v5')
k.e('v_xor_b32 v8, 0xc0, v5')
k.e(f's_lshl_b32 s{T0}, s{SKH}, 11')
k.e(f's_add_u32 s{T0}, s{T0}, s{T1}')
k.e(f's_add_u32 s{T0}, s{T0}, {WB}')
addrA_128(9, 3, T0)
k.e(f'v_bfe_u32 v2, v{VL}, 2, 2')
k.e(f'v_lshl_add_u32 v2, v{VH}, 3, v2')
k.e('v_lshlrev_b32 v2, 5, v2')
k.e(f'v_bfe_u32 v3, v{VL}, 4, 1')
k.e('v_lshl_add_u32 v2, v3, 14, v2')
k.e(f'v_and_b32 v3, 3, v{VL}')
k.e('v_lshl_add_u32 v2, v3, 3, v2')
k.e(f's_lshl_b32 s{T0}, s{SKH}, 9')
k.e(f's_lshl_b32 s{T1}, s{SM}, 13')
k.e(f's_add_u32 s{T0}, s{T0}, s{T1}')
k.e(f's_add_u32 s{T0}, s{T0}, {KVB}')
k.e(f'v_add_u32 v10, s{T0}, v2')
BF = 60
ACC, CS, AB = 16, 32, 48
ONEF = 0
for r in range(4): k.e(f'v_accvgpr_write_b32 a{r}, s{SONE}') if False else None
k.e(f'v_mov_b32 v2, s{SONE}')
for r in range(4): k.e(f'v_accvgpr_write_b32 a{r}, v2')
k.e('v_mov_b32 v124, 0')
k.e('v_mov_b32 v125, 0')
k.e('s_waitcnt vmcnt(8)')
k.e('s_barrier')
stamp()
for i in range(8):
    k.e(f'ds_read_b128 {v(BF+4*i,4)}, v{5+(i&3)} offset:{(i>>2)*16384}')
for q in range(4): k.e(f'v_xor_b32 v{5+q}, 0x8000, v{5+q}')
la = k.label('noat')
k.e(f's_cmp_lg_u32 s{SW}, 7')
k.e(f's_cbranch_scc1 {la}')
k.e(f's_getreg_b32 s{T0}, hwreg(HW_REG_XCC_ID, 0, 4)')
k.e(f's_lshl_b32 s{T0}, 1, s{T0}')
k.e(f's_add_u32 s{T1}, s{SJ}, 16')
k.e(f's_lshl_b32 s{T1}, 1, s{T1}')
k.e(f's_or_b32 s{T0}, s{T0}, s{T1}')
k.e(f's_lshl_b32 s{T1}, s{SCL}, 2')
k.e(f'v_mov_b32 v2, s{T1}')
k.e(f'v_mov_b32 v3, s{T0}')
k.e('s_mov_b64 exec, 1')
k.e(f'global_atomic_or v2, v3, s[{P_DBG}:{P_DBG+1}] offset:128 sc1')
k.e('s_mov_b64 exec, -1')
k.e(f'{la}:')
SC_ST, SC_CS, SC_KV, SC_VT = 0, 2048, 4096, 20480
lprod, lq = k.label('prod'), k.label('qproj')
def stats_dot():
    for i in range(8):
        if i in (0, 4): k.e(f's_waitcnt lgkmcnt({4 if i == 0 else 0})') if False else None
        for r in range(4):
            k.e(f'v_dot2c_f32_bf16 v124, s{SONE}, v{BF+4*i+r}')
            k.e(f'v_dot2c_f32_bf16 v125, v{BF+4*i+r}, v{BF+4*i+r}')
def hi_reads():
    for i in range(8, 16):
        k.e(f'ds_read_b128 {v(BF+4*i,4)}, v{5+(i&3)} offset:{((i-8)>>2)*16384}')
def stats_write():
    k.e('s_nop 2')
    k.e('v_permlane32_swap_b32 v124, v125')
    k.e(f's_lshl_b32 s{T0}, s{SW}, 8')
    k.e(f'v_lshlrev_b32 v2, 2, v{VL}')
    k.e(f'v_add_u32 v2, s{T0}, v2')
    k.e('v_add_f32 v124, v124, v125')
def stats_read(d):
    k.e(f'v_and_b32 v2, 31, v{VL}')
    k.e('v_lshlrev_b32 v2, 2, v2')
    k.e(f's_lshl_b32 s{T0}, s{SN}, 10')
    k.e(f'v_add_u32 v2, s{T0}, v2')
    for q in range(4):
        k.e(f'ds_read2_b32 {v(d+2*q,2)}, v2 offset0:{(SC_ST+q*256)//4} offset1:{(SC_ST+q*256+128)//4}')
    k.e('s_waitcnt lgkmcnt(0)')
    k.e(f'v_add_f32 v{d}, v{d}, v{d+2}')
    k.e(f'v_add_f32 v{d+1}, v{d+1}, v{d+3}')
    k.e(f'v_add_f32 v{d+4}, v{d+4}, v{d+6}')
    k.e(f'v_add_f32 v{d+5}, v{d+5}, v{d+7}')
    k.e(f'v_add_f32 v{d}, v{d}, v{d+4}')
    k.e(f'v_add_f32 v{d+1}, v{d+1}, v{d+5}')
    mean_rstd(d, d+1)
k.e(f's_cmp_lt_u32 s{SJ}, 2')
k.e(f's_cbranch_scc1 {lprod}')
k.e('s_waitcnt lgkmcnt(0)')
hi_reads()
stats_dot()
stats_write()
k.e('s_waitcnt lgkmcnt(0)')
k.e('s_barrier')
k.e(f'ds_write_b32 v2, v124 offset:{SC_ST}')
k.e(f's_branch {lq}')
k.e(f'{lprod}:')
lduty, lpj = k.label('duty'), k.label('pj')
k.e('s_waitcnt lgkmcnt(0)')
for i in range(4):
    for t in range(2):
        k.e(f'ds_read_b64_tr_b16 {v(BF+32+4*i+2*t,2)}, v10 offset:{i*1024 + t*128}')
for i in range(4, 8):
    for t in range(2):
        if i == 7 and t == 1: k.e('s_waitcnt lgkmcnt(8)')
        k.e(f'ds_read_b64_tr_b16 {v(BF+32+4*i+2*t,2)}, v10 offset:{i*1024 + t*128}')
stats_dot()
k.e('s_waitcnt lgkmcnt(0)')
k.e(f's_cmp_eq_u32 s{SJ}, s{SN}')
k.e(f's_cbranch_scc1 {lduty}')
for i in range(8): mf(ACC, BF+32+4*i, ONEF, None if i == 0 else ACC, bt='a')
k.e(f's_branch {lpj}')
k.e(f'{lduty}:')
for i in range(8): mf(ACC, BF+32+4*i, BF+4*i, None if i == 0 else ACC)
k.e(f'{lpj}:')
hi_reads()
stats_write()
k.e('s_waitcnt lgkmcnt(0)')
k.e('s_barrier')
k.e(f'ds_write_b32 v2, v124 offset:{SC_ST}')
lcs, lpw = k.label('cs'), k.label('pw')
k.e(f's_and_b32 s{T2}, s{SW}, 3')
k.e('s_nop 4')
k.e(f's_cmp_lg_u32 s{SJ}, s{SN}')
k.e(f's_cbranch_scc1 {lcs}')
k.e(f's_lshl_b32 s{T0}, s{T2}, 12')
k.e(f'v_add_u32 v3, s{T0}, v{VL16}')
for q in range(4): k.e(f'ds_write_b128 v3, {v(ACC+4*q,4)} offset:{SC_KV + q*1024}')
k.e(f's_branch {lpw}')
k.e(f'{lcs}:')
k.e(f's_lshl_b32 s{T0}, s{T2}, 7')
k.e(f'v_lshlrev_b32 v3, 6, v{VH}')
k.e(f'v_add_u32 v3, s{T0}, v3')
k.e('s_mov_b32 exec_lo, 1')
k.e('s_mov_b32 exec_hi, 1')
for q in range(4): k.e(f'ds_write_b128 v3, {v(ACC+4*q,4)} offset:{SC_CS + q*16}')
k.e('s_mov_b64 exec, -1')
k.e(f'{lpw}:')
k.e('s_waitcnt lgkmcnt(0)')
k.e('s_barrier')
k.e(f's_lshl_b32 s{T0}, s{SJ}, 2')
k.e(f's_cmp_lg_u32 s{SW}, s{T0}')
k.e(f's_cbranch_scc1 {lq}')
k.e(f'v_lshlrev_b32 v3, 6, v{VH}')
for p in range(1, 4):
    for q in range(4): k.e(f'ds_read_b128 {v(CS+4*q,4)}, v{VL16} offset:{SC_KV + p*4096 + q*1024}')
    k.e('s_waitcnt lgkmcnt(0)')
    for r in range(16): k.e(f'v_add_f32 v{ACC+r}, v{ACC+r}, v{CS+r}')
stats_read(48)
for p in range(4):
    for q in range(4): k.e(f'ds_read_b128 {v(CS+4*q,4)}, v3 offset:{SC_CS + p*128 + q*16}')
    k.e('s_waitcnt lgkmcnt(0)')
    for r in range(16): k.e(f'v_fma_f32 v{ACC+r}, -v48, v{CS+r}, v{ACC+r}')
for r in range(16): k.e(f'v_mul_f32 v{ACC+r}, v49, v{ACC+r}')
for r in range(8): k.e(f'v_cvt_pk_bf16_f32 v{CS+r}, v{ACC+2*r}, v{ACC+2*r+1}')
k.e(f'v_and_b32 v2, 31, v{VL}')
k.e('v_lshlrev_b32 v2, 5, v2')
k.e(f'v_lshl_add_u32 v2, v{VH}, 3, v2')
k.e(f'ds_write_b64 v2, {v(CS+4,2)} offset:{SC_VT}')
k.e(f'ds_write_b64 v2, {v(CS+6,2)} offset:{SC_VT+16}')
k.e(f's_lshl_b32 s{T4}, s{SCL}, 1')
k.e(f's_add_u32 s{T4}, s{T4}, s{SN}')
k.e(f's_lshl_b32 s{T0}, s{T4}, 10')
k.e(f'buffer_store_dwordx4 {v(CS,4)}, v{VL16}, s[{R_WS}:{R_WS+3}], s{T0} offen sc1')
k.e(f'v_lshrrev_b32 v2, 4, v{VL}')
k.e('v_lshlrev_b32 v2, 8, v2')
k.e(f'v_and_b32 v3, 15, v{VL}')
k.e('v_lshl_add_u32 v2, v3, 3, v2')
k.e('s_waitcnt lgkmcnt(0)')
k.e(f'ds_read_b64_tr_b16 {v(CS+8,2)}, v2 offset:{SC_VT}')
k.e(f'ds_read_b64_tr_b16 {v(CS+10,2)}, v2 offset:{SC_VT+128}')
k.e('v_mov_b32 v50, 0')
for r in range(4): k.e(f'v_dot2c_f32_bf16 v50, v{CS+r}, v{CS+r}')
for r in range(8): k.e(f'v_and_b32 v{ACC+8+r}, 0x7fffffff, v{ACC+8+r}')
k.e('v_mov_b32 v52, v50')
k.e(f'v_max3_u32 v51, v{ACC+8}, v{ACC+9}, v{ACC+10}')
k.e(f'v_max3_u32 v51, v51, v{ACC+11}, v{ACC+12}')
k.e('v_permlane32_swap_b32 v50, v52')
k.e(f'v_max3_u32 v51, v51, v{ACC+13}, v{ACC+14}')
k.e(f'v_max_u32 v51, v51, v{ACC+15}')
k.e('v_add_f32 v50, v50, v52')
k.e(f's_add_u32 s{T0}, s{T0}, {WS_V:#x}')
k.e('s_waitcnt lgkmcnt(0)')
k.e(f'buffer_store_dwordx4 {v(CS+8,4)}, v{VL16}, s[{R_WS}:{R_WS+3}], s{T0} offen sc1')
wave_umax(50, T0, T5)
wave_umax(51, T1, T5)
k.e(f'v_mov_b32 v50, s{T0}')
k.e(f'v_mov_b32 v51, s{T1}')
k.e('v_mov_b32 v2, 0')
k.e(f's_lshl_b32 s{T0}, s{T4}, 2')
k.e(f's_add_u32 s{T0}, s{T0}, {WS_MX:#x}')
k.e(f's_lshl_b32 s{T1}, s{T4}, 1')
k.e(f'v_mov_b32 v3, s{T1}')
k.e('v_mov_b32 v52, 1')
k.e('s_mov_b64 exec, 1')
k.e(f'buffer_store_dword v50, v2, s[{R_WS}:{R_WS+3}], s{T0} offen sc1')
k.e(f'buffer_store_dword v51, v2, s[{R_WS}:{R_WS+3}], s{T0} offen offset:256 sc1')
k.e('s_waitcnt vmcnt(0)')
k.e(f'global_store_short v3, v52, s[{P_DBG}:{P_DBG+1}] sc1')
k.e('s_mov_b64 exec, -1')
k.e(f'{lq}:')
stamp()
k.e('s_waitcnt vmcnt(0) lgkmcnt(0)') if False else None
k.e('s_waitcnt vmcnt(0) lgkmcnt(0)')
k.e('s_barrier')
stamp()
def a_reads(i):
    for t in range(2):
        k.e(f'ds_read_b64_tr_b16 {v(AB+4*(i%3)+2*t,2)}, v9 offset:{(i&7)*4096 + t*512}')
a_reads(0); a_reads(1)
for i in range(16):
    if i+2 < 16:
        if i+2 == 8: k.e('v_xor_b32 v9, 0x8000, v9')
        a_reads(i+2)
        k.e('s_waitcnt lgkmcnt(4)')
    else:
        k.e(f's_waitcnt lgkmcnt({2*(15-i)})')
    mf(ACC, AB+4*(i%3), BF+4*i, None if i == 0 else ACC)
    mf(CS, AB+4*(i%3), ONEF, None if i == 0 else CS, bt='a')
stats_read(48)
k.e(f'v_mul_f32 v49, {f2u(QS):#x}, v49')
SC_Q = 32768
k.e(f's_lshl_b32 s{T0}, s{SW}, 12')
k.e(f'v_add_u32 v3, s{T0}, v{VL16}')
k.e('v_xor_b32 v4, 0x2000, v3')
for r in range(16): k.e(f'v_fma_f32 v{ACC+r}, -v48, v{CS+r}, v{ACC+r}')
for q in range(4): k.e(f'ds_write_b128 v3, {v(ACC+4*q,4)} offset:{SC_Q + q*1024}')
k.e('s_waitcnt lgkmcnt(0)')
k.e('s_barrier')
for q in range(4): k.e(f'ds_read_b128 {v(CS+4*q,4)}, v4 offset:{SC_Q + q*1024}')
k.e('s_waitcnt lgkmcnt(0)')
k.e('s_barrier')
QA, QB, SA, SB, OA, OB = 4, 8, 16, 32, 48, 64
KB = [80, 84]; VB = [88, 96]; VIDX, VK, VV, VW1, VST, MA, MB = 104, 105, 106, 107, 108, 109, 110
XRES = 112
for r in range(16): k.e(f'v_add_f32 v{ACC+r}, v{ACC+r}, v{CS+r}')
for r in range(16): k.e(f'v_mul_f32 v{ACC+r}, v49, v{ACC+r}')
for r in range(8): k.e(f'v_cvt_pk_bf16_f32 v{QA+r}, v{ACC+2*r}, v{ACC+2*r+1}')
stamp()
lp = k.label('kvpoll')
k.e(f'v_lshlrev_b32 v2, 2, v{VL}')
k.e(f's_add_u32 s{T4}, s{SCL}, 32')
k.e(f'v_mov_b32 v12, 0x10001')
k.e(f'{lp}:')
k.e(f'global_load_dword v3, v2, s[{P_DBG}:{P_DBG+1}] sc1')
k.e(f's_sub_u32 s{SSPIN}, s{SSPIN}, 1')
k.e(f's_cbranch_scc1 {LEND}')
k.e('s_waitcnt vmcnt(0)')
k.e('v_cmp_ne_u32 vcc, v12, v3')
k.e(f'v_readlane_b32 s{T0}, v3, s{T4}')
k.e('s_nop 3')
k.e('s_cmp_lg_u32 vcc_lo, 0')
k.e(f's_cbranch_scc1 {lp}')
k.e(f's_lshr_b32 s{T1}, s{T0}, 16')
k.e(f's_cmp_lg_u32 s{T1}, 0xff')
k.e(f's_cbranch_scc1 {lp}')
k.e(f's_and_b32 s{T0}, s{T0}, 0xffff')
k.e(f's_bcnt1_i32_b32 s{T0}, s{T0}')
k.e(f's_cmp_eq_u32 s{T0}, 1')
k.e(f's_cselect_b32 s{SFAST}, {0 if "slow" in OPT else 1}, 0')
stamp()
k.e(f's_mov_b32 s{T0}, {WS_MX:#x}')
k.e(f'buffer_load_dword v116, v2, s[{R_WS}:{R_WS+3}], s{T0} offen sc1')
k.e(f'buffer_load_dword v117, v2, s[{R_WS}:{R_WS+3}], s{T0} offen offset:256 sc1')
k.e(f's_lshl_b32 s{T0}, s{SW}, 10')
for st in range(8):
    for kv in range(2):
        off = st*8192 + kv*65536
        k.e(f's_add_u32 m0, s{T0}, {off}')
        k.e(f's_add_u32 s{T1}, s{T0}, {off}')
        dma(VL16, R_WS, T1, 'sc1')
for r in range(SB, OB+16): k.e(f'v_mov_b32 v{r}, 0')
for r in range(VB[0], VB[1]+8): k.e(f'v_mov_b32 v{r}, 0')
k.e('s_mov_b32 exec_lo, 0x11')
k.e('s_mov_b32 exec_hi, 0x11')
for r in range(VB[0], VB[1]+8): k.e(f'v_mov_b32 v{r}, s{SONE}')
k.e('s_mov_b64 exec, -1')
k.e(f'v_mov_b32 v{VIDX}, 0xdddddddd')
k.e(f's_lshl_b32 s{T0}, s{SKH}, 10')
k.e(f'v_add_u32 v{VK}, s{T0}, v{VL16}')
k.e(f'v_and_b32 v12, 15, v{VL}')
k.e(f'v_lshl_add_u32 v12, v{VH}, 4, v12')
k.e('v_lshlrev_b32 v12, 4, v12')
k.e(f's_add_u32 s{T0}, s{T0}, 65536')
k.e(f'v_add_u32 v{VV}, s{T0}, v12')
k.e(f's_mov_b32 s{SMASK}, 0xffff0000')
k.e(f's_mov_b32 s{SMASK+1}, 0xffff0000')
k.e(f's_mul_i32 s{STILE}, s{SJ}, 5')
k.e(f's_min_u32 s{T0}, s{SJ}, 3')
k.e(f's_add_u32 s{STILE}, s{STILE}, s{T0}')
k.e(f's_add_u32 s{T0}, s{SM}, 4')
k.e(f's_cmp_lt_u32 s{SW}, 4')
k.e(f's_cselect_b32 s{T0}, s{SW}, s{T0}')
k.e(f's_add_u32 s{STILE}, s{STILE}, s{T0}')
k.srd(R_B, P_W1, 512*2752)
k.e(f'v_lshrrev_b32 v2, 2, v{VL}')
k.e(f'v_and_b32 v3, 3, v{VL}')
k.e('v_lshlrev_b32 v3, 4, v3')
k.e(f's_movk_i32 s{T0}, 2752')
k.e(f'v_mad_u32_u24 v{VW1}, v2, s{T0}, v3')
STG = 131072
k.e(f'v_bfe_u32 v2, v{VL}, 2, 2')
k.e(f'v_lshl_add_u32 v2, v{VH}, 2, v2')
k.e('v_lshlrev_b32 v2, 6, v2')
k.e(f'v_bfe_u32 v3, v{VL}, 4, 1')
k.e('v_lshl_add_u32 v2, v3, 5, v2')
k.e(f'v_and_b32 v3, 3, v{VL}')
k.e('v_lshl_add_u32 v2, v3, 3, v2')
SW1G, SW1L = 74, 75
k.e(f's_lshl_b32 s{SW1L}, s{SW}, 12')
k.e(f's_add_u32 s{SW1L}, s{SW1L}, {STG}')
k.e(f'v_add_u32 v{VST}, s{SW1L}, v2')
k.e(f's_lshl_b32 s{SW1G}, s{STILE}, 6')
k.e('v_mov_b32 v12, 0')
k.e('v_mov_b32 v13, 0')
for r in range(4):
    k.e(f'v_dot2c_f32_bf16 v12, v{QA+r}, v{QA+r}')
    k.e(f'v_dot2c_f32_bf16 v13, v{QB+r}, v{QB+r}')
k.e('s_waitcnt vmcnt(16)')
wave_umax(116, T0, T5)
wave_umax(117, T1, T5)
k.e('v_permlane32_swap_b32 v12, v13')
k.e('s_nop 1')
k.e('v_add_f32 v12, v12, v13')
k.e(f'v_mul_f32 v12, s{T0}, v12')
k.e(f'v_mov_b32 v13, {f2u(TSAFE*TSAFE):#x}')
k.e('v_cmp_nle_f32 vcc, v12, v13')
lfb, lepi = k.label('fallback'), k.label('attepi')
k.e(f's_cmp_gt_u32 s{T1}, {f2u(2.0**60):#x}')
k.e(f's_cbranch_scc1 {lfb}')
k.e('s_nop 2')
k.e('s_cmp_lg_u64 vcc, 0')
k.e(f's_cbranch_scc1 {lfb}')
if 'fb' in OPT: k.e(f's_branch {lfb}')

def sm(o, a, b): k.e(f'v_smfmac_f32_32x32x32_bf16 {v(o,16)}, {v(a,4)}, {v(b,8)}, v{VIDX}')
def w1_issue(t):
    for u in range(2):
        k.e(f's_add_u32 m0, s{SW1L}, {(t&1)*2048 + u*1024}')
        k.e(f's_add_u32 s{T1}, s{SW1G}, {(2*t+u)*16*2752}')
        dma(VW1, R_B, T1)
def w1_fetch(t):
    for u in range(2):
        for tt in range(2):
            k.e(f'ds_read_b64_tr_b16 {a_(8*t+4*u+2*tt,2)}, v{VST} offset:{(t&1)*2048 + u*1024 + tt*512}')
def attention(fb):
    def ex(r, M):
        if fb: k.e(f'v_sub_f32 v{r}, v{r}, v{M}')
        k.e(f'v_exp_f32 v{r}, v{r}')
    def phase(X, Y, OX, OY, QY, MX, Vprev1, Vcur0, Kf, mid=None, last=False):
        ex(X, MX); ex(X+1, MX)
        sm(OY, Vprev1, Y+8)
        for r in range(2, 5): ex(X+r, MX)
        if not last: mf(Y, Kf, QY)
        for r in range(5, 10): ex(X+r, MX)
        sm(OX, Vcur0, X)
        if mid: mid()
        for r in range(10, 16): ex(X+r, MX)
    k.e('s_waitcnt vmcnt(14)')
    k.e('s_barrier')
    if not fb: stamp()
    k.e(f'ds_read_b128 {v(KB[0],4)}, v{VK}')
    k.e(f'ds_read_b128 {v(KB[1],4)}, v{VK} offset:2048')
    k.e(f's_mov_b64 exec, s[{SMASK}:{SMASK+1}]')
    k.e(f'ds_read_b128 {v(VB[0],4)}, v{VV}')
    k.e(f'ds_read_b128 {v(VB[0]+4,4)}, v{VV} offset:512')
    k.e('s_mov_b64 exec, -1')
    k.e('s_waitcnt lgkmcnt(0)')
    mf(SA, KB[0], QA)
    k.e('s_setprio 3')
    k.e('s_nop 7')
    k.e('s_nop 3')
    for i in range(32):
        p = i & 1; t = i >> 1
        if i == 2:
            k.e('s_waitcnt vmcnt(10)')
            k.e('s_barrier')
        if i == 6:
            k.e('s_waitcnt vmcnt(0)')
            k.e('s_barrier')
        if i == 22: k.e('s_setprio 2')
        if i == 28: k.e('s_setprio 1')
        if i == 31: k.e('s_setprio 0')
        def mid():
            if i+2 < 32: k.e(f'ds_read_b128 {v(KB[p],4)}, v{VK} offset:{2048*(i+2)}')
            if i+1 < 32:
                k.e(f's_mov_b64 exec, s[{SMASK}:{SMASK+1}]')
                k.e(f'ds_read_b128 {v(VB[1-p],4)}, v{VV} offset:{2048*(i+1)}')
                k.e(f'ds_read_b128 {v(VB[1-p]+4,4)}, v{VV} offset:{2048*(i+1)+512}')
                k.e('s_mov_b64 exec, -1')
        def mid2():
            c = i - 8
            if 0 <= c < 16:
                k.e(f's_waitcnt vmcnt({2 if c < 15 else 0})')
                w1_fetch(c)
        def mid3():
            c = i - 6
            if 0 <= c < 16: w1_issue(c)
        k.e('s_waitcnt lgkmcnt(0)')
        def midA():
            mid()
            if i - 6 < 2: mid3()
        def midB():
            mid2()
        if i - 6 >= 2:
            pass
        phase(SA, SB, OA, OB, QB, MA, VB[1-p]+4, VB[p], KB[p], midA)
        phase(SB, SA, OB, OA, QA, MB, VB[p]+4, VB[p], KB[1-p], midB, last=(i == 31))
        if i - 6 >= 2 and i - 6 < 16:
            k.e('s_waitcnt lgkmcnt(0)')
            mid3()
    k.e('s_nop 1')
    sm(OB, VB[1]+4, SB+8)
attention(False)
k.e(f'{lepi}:')
stamp()
k.srd(R_B, P_WO, 512*1024)
SC = STG
k.e(f's_mul_i32 s{T0}, s{SW}, 4096')
k.e(f's_add_u32 s{T0}, s{T0}, {SC}')
k.e(f'v_add_u32 v2, s{T0}, v{VL16}')
k.e('v_xor_b32 v3, 0x2000, v2')
k.e(f'v_and_b32 v12, 31, v{VL}')
k.e(f'v_lshlrev_b32 v13, 4, v{VH}')
k.e('v_lshl_add_u32 v111, v12, 10, v13')
k.e(f'buffer_load_dwordx4 {v(XRES,4)}, v111, s[{R_A}:{R_A+3}], s{SROW} offen')
k.e('s_nop 3')
k.e('s_waitcnt lgkmcnt(0)')
l1, l2 = k.label('kh1'), k.label('khj')
k.e(f's_cmp_eq_u32 s{SKH}, 1')
k.e(f's_cbranch_scc1 {l1}')
k.e(f'ds_write_b128 v2, {v(OB+8,4)}')
k.e(f'ds_write_b128 v2, {v(OB+12,4)} offset:1024')
k.e(f'ds_write_b32 v2, v{OB} offset:2048')
k.e(f's_branch {l2}')
k.e(f'{l1}:')
k.e(f'ds_write_b128 v2, {v(OA+8,4)}')
k.e(f'ds_write_b128 v2, {v(OA+12,4)} offset:1024')
k.e(f'ds_write_b32 v2, v{OA} offset:2048')
k.e('s_waitcnt lgkmcnt(0)')
k.e(f'v_mov_b32 v{OA}, v{OB}')
for r in range(8, 16): k.e(f'v_mov_b32 v{OA+r}, v{OB+r}')
k.e(f'{l2}:')
k.e('s_waitcnt lgkmcnt(0)')
k.e('s_barrier')
k.e(f'ds_read_b32 v{SA}, v3 offset:2048')
k.e(f'ds_read_b128 {v(SA+8,4)}, v3')
k.e(f'ds_read_b128 {v(SA+12,4)}, v3 offset:1024')
k.e(f's_add_u32 s{T4}, s{SFRAG}, {WS_O:#x}')
k.e('s_waitcnt lgkmcnt(2)')
k.e(f'v_add_f32 v{OA}, v{OA}, v{SA}')
k.e(f'v_rcp_f32 v{OA}, v{OA}')
k.e('s_waitcnt lgkmcnt(0)')
for r in range(8, 16): k.e(f'v_add_f32 v{OA+r}, v{OA+r}, v{SA+r}')
for r in range(8, 16): k.e(f'v_mul_f32 v{OA+r}, v{OA}, v{OA+r}')
for i in range(4): k.e(f'v_cvt_pk_bf16_f32 v{SB+i}, v{OA+8+2*i}, v{OA+9+2*i}')
pub_store([f'buffer_store_dwordx4 {v(SB,4)}, v{VL16}, s[{R_WS}:{R_WS+3}], s{T4} offen'])
set_flag(0)
stamp()
voffW_128(13)
wslab_issue(R_B, WB)
poll_flags(0)
stamp()
def act_issue(wsoff, ldsbase):
    k.e(f's_lshl_b32 s{T0}, s{SW}, 10')
    k.e(f's_lshl_b32 s{T1}, s{SCL}, 16')
    k.e(f's_add_u32 s{T1}, s{T1}, s{T0}')
    for kc in range(4):
        for u in range(2):
            k.e(f's_add_u32 m0, s{T0}, {ldsbase + kc*8192 + u*32768}')
            k.e(f's_add_u32 s{T3}, s{T1}, {wsoff + kc*8192 + u*32768}')
            dma(VL16, R_WS, T3, 'sc1')
act_issue(WS_O, 0)
k.e(f's_lshl_b32 s{T0}, s{SKH}, 11')
k.e(f's_add_u32 s{T0}, s{T0}, {WB}')
addrA_128(6, 2, T0)
k.e(f's_lshl_b32 s{T0}, s{SN}, 15')
k.e(f's_lshl_b32 s{T1}, s{SKH}, 10')
k.e(f's_add_u32 s{T0}, s{T0}, s{T1}')
k.e(f'v_add_u32 v5, s{T0}, v{VL16}')
k.e(f'v_permlane32_swap_b32 v{XRES}, v{XRES+2}')
k.e(f'v_permlane32_swap_b32 v{XRES+1}, v{XRES+3}')
B0, A0 = 48, 64
for kc in range(4):
    k.e(f's_waitcnt vmcnt({(3-kc)*2})')
    k.e('s_barrier')
    for i in range(4):
        k.e(f'ds_read_b128 {v(B0+4*i,4)}, v5 offset:{(8*kc+2*i)*1024}')
        for t in range(2):
            k.e(f'ds_read_b64_tr_b16 {v(A0+4*i+2*t,2)}, v6 offset:{(16*(8*kc+2*i)+8*t)*128}')
    for i in range(4):
        k.e(f's_waitcnt lgkmcnt({9-3*i})')
        mf(16, A0+4*i, B0+4*i, None if (kc == 0 and i == 0) else 16)
stamp()
def exch8(SCX):
    k.e(f's_lshl_b32 s{T0}, s{SW}, 11')
    k.e(f's_add_u32 s{T0}, s{T0}, {SCX}')
    k.e(f'v_add_u32 v2, s{T0}, v{VL16}')
    k.e('v_xor_b32 v3, 0x1000, v2')
    l1, l2 = k.label('kh1'), k.label('khj')
    k.e('s_nop 7')
    k.e(f's_cmp_eq_u32 s{SKH}, 1')
    k.e(f's_cbranch_scc1 {l1}')
    k.e('ds_write_b128 v2, v[24:27]')
    k.e('ds_write_b128 v2, v[28:31] offset:1024')
    k.e(f's_branch {l2}')
    k.e(f'{l1}:')
    k.e('ds_write_b128 v2, v[16:19]')
    k.e('ds_write_b128 v2, v[20:23] offset:1024')
    k.e('s_waitcnt lgkmcnt(0)')
    for r in range(8): k.e(f'v_mov_b32 v{16+r}, v{24+r}')
    k.e(f'{l2}:')
    k.e('s_waitcnt lgkmcnt(0)')
    k.e('s_barrier')
    k.e('ds_read_b128 v[48:51], v3')
    k.e('ds_read_b128 v[52:55], v3 offset:1024')
exch8(STG)
for r in range(4):
    k.e(f'v_lshlrev_b32 v{56+2*r}, 16, v{XRES+r}')
    k.e(f'v_and_b32 v{57+2*r}, 0xffff0000, v{XRES+r}')
for r in range(8): k.e(f'v_add_f32 v{16+r}, v{16+r}, v{56+r}')
k.e('s_waitcnt lgkmcnt(0)')
for r in range(8): k.e(f'v_add_f32 v{16+r}, v{16+r}, v{48+r}')
for r in range(4): k.e(f'v_cvt_pk_bf16_f32 v{XRES+r}, v{16+2*r}, v{17+2*r}')
k.e('v_mov_b32 v24, 0')
k.e('v_mov_b32 v25, 0')
for r in range(4):
    k.e(f'v_dot2c_f32_bf16 v24, s{SONE}, v{XRES+r}')
    k.e(f'v_dot2c_f32_bf16 v25, v{XRES+r}, v{XRES+r}')
k.e(f's_add_u32 s{T4}, s{SFRAG}, {WS_H:#x}')
k.e(f's_lshr_b32 s{T5}, s{SFRAG}, 2')
k.e(f's_add_u32 s{T5}, s{T5}, {WS_S2:#x}')
k.e('v_permlane32_swap_b32 v24, v25')
k.e(f'v_lshlrev_b32 v4, 2, v{VL}')
k.e('v_add_f32 v24, v24, v25')
pub_store([f'buffer_store_dwordx4 {v(XRES,4)}, v{VL16}, s[{R_WS}:{R_WS+3}], s{T4} offen',
           f'buffer_store_dword v24, v4, s[{R_WS}:{R_WS+3}], s{T5} offen'])
set_flag(1)
stamp()
CS1, BI = 80, 96
k.srd(R_C, P_B1, 1376*2)
k.e(f'v_lshlrev_b32 v4, 3, v{VH}')
k.e(f's_lshl_b32 s{T0}, s{STILE}, 6')
for q in range(4):
    k.e(f'buffer_load_dwordx2 {v(BI+2*q,2)}, v4, s[{R_C}:{R_C+3}], s{T0} offen offset:{q*16}')
for r in range(4): k.e(f'v_mov_b32 v{8+r}, s{SONE}')
k.e('s_nop 1')
for i in range(32): mf(CS1, 4*i, 8, None if i == 0 else CS1, at='a')
poll_flags(1)
stamp()
S2B = 65536
k.e(f's_lshl_b32 s{T0}, s{SW}, 10')
k.e(f's_lshl_b32 s{T1}, s{SCL}, 14')
k.e(f's_add_u32 s{T1}, s{T1}, s{T0}')
for u in range(2):
    k.e(f's_add_u32 m0, s{T0}, {S2B + u*8192}')
    k.e(f's_add_u32 s{T3}, s{T1}, {WS_S2 + u*8192}')
    dma(VL16, R_WS, T3, 'sc1')
act_issue(WS_H, 0)
k.e(f's_lshl_b32 s{T0}, s{SKH}, 15')
k.e(f's_cmp_lt_u32 s{SW}, 4')
k.e(f's_cselect_b32 s{T0}, 0, s{T0}')
k.e(f'v_add_u32 v5, s{T0}, v{VL16}')
lhalf, lgelu = k.label('half'), k.label('gelu')
SCF = S2B + 16384
k.e(f's_cbranch_scc0 {lhalf}')
U0, U1, FB = 16, 32, 48
for kc in range(4):
    k.e(f's_waitcnt vmcnt({(3-kc)*2})')
    k.e('s_barrier')
    for hh in range(2):
        for i in range(4):
            ks = 8*kc + 4*hh + i
            k.e(f'ds_read_b128 {v(FB+8*i,4)}, v5 offset:{ks*1024}')
            k.e(f'ds_read_b128 {v(FB+8*i+4,4)}, v5 offset:{32768 + ks*1024}')
        for i in range(4):
            ks = 8*kc + 4*hh + i
            k.e(f's_waitcnt lgkmcnt({7-2*i})')
            mf(U0, 4*ks, FB+8*i, None if ks == 0 else U0, at='a')
            k.e(f's_waitcnt lgkmcnt({6-2*i})')
            mf(U1, 4*ks, FB+8*i+4, None if ks == 0 else U1, at='a')
k.e(f's_branch {lgelu}')
k.e(f'{lhalf}:')
for kc in range(4):
    k.e(f's_waitcnt vmcnt({(3-kc)*2})')
    k.e('s_barrier')
    if kc == 0:
        k.e(f's_lshl_b32 s{T0}, s{SKH}, 13')
        k.e(f's_add_u32 s{T0}, s{T0}, {S2B}')
        k.e(f'v_lshlrev_b32 v2, 2, v{VL}')
        k.e(f'v_add_u32 v2, s{T0}, v2')
        for half in range(2):
            for q in range(8):
                s0 = half*16 + 2*q
                k.e(f'ds_read2st64_b32 {v(U1+2*q,2)}, v2 offset0:{s0} offset1:{s0+1}')
            k.e('s_waitcnt lgkmcnt(0)')
            for q in range(8): k.e(f'v_add_f32 v{U1+q}, v{U1+q}, v{U1+8+q}')
            for q in range(4): k.e(f'v_add_f32 v{U1+q}, v{U1+q}, v{U1+4+q}')
            for q in range(2): k.e(f'v_add_f32 v{U1+q}, v{U1+q}, v{U1+2+q}')
            k.e(f'v_add_f32 v{6+half}, v{U1}, v{U1+1}')
        k.e('v_add_f32 v6, v6, v7')
        k.e('v_mov_b32 v7, v6')
        k.e('s_nop 1')
        k.e('v_permlane32_swap_b32 v6, v7')
        k.e('s_nop 1')
        mean_rstd(6, 7)
        k.e(f'v_and_b32 v2, 31, v{VL}')
        k.e('v_lshlrev_b32 v2, 3, v2')
        k.e(f's_lshl_b32 s{T0}, s{SKH}, 8')
        k.e(f's_add_u32 s{T0}, s{T0}, {SCF}')
        k.e(f'v_add_u32 v2, s{T0}, v2')
        k.e('ds_write_b64 v2, v[6:7]')
        k.e('s_waitcnt lgkmcnt(0)')
    for i in range(8):
        k.e(f'ds_read_b128 {v(FB+4*i,4)}, v5 offset:{(8*kc+i)*1024}')
    for i in range(8):
        ks = 8*kc + i
        k.e(f's_waitcnt lgkmcnt({7-i})')
        mf(U0, 4*ks, FB+4*i, None if ks == 0 else U0, at='a')
k.e(f'{lgelu}:')
stamp()
for q in range(8):
    k.e(f'v_lshlrev_b32 v{48+2*q}, 16, v{BI+q}')
    k.e(f'v_and_b32 v{49+2*q}, 0xffff0000, v{BI+q}')
k.e(f's_mov_b32 s{T6}, {f2u(GC1):#x}')
k.e(f'v_mov_b32 v12, {f2u(GC0):#x}')
def gelu(u, tbsrc):
    tmp = 64
    for r in range(16): k.e(f'v_fma_f32 v{u+r}, -v6, v{CS1+r}, v{u+r}')
    for r in range(16): k.e(f'v_fma_f32 v{u+r}, v{u+r}, v7, v{48+r}')
    for r in range(16): k.e(f'v_mul_f32 v{tmp+r}, v{u+r}, v{u+r}')
    for r in range(16): k.e(f'v_fma_f32 v{tmp+r}, v{tmp+r}, s{T6}, v12')
    for r in range(16): k.e(f'v_mul_f32 v{tmp+r}, v{tmp+r}, v{u+r}')
    for r in range(16): k.e(f'v_exp_f32 v{tmp+r}, v{tmp+r}')
    for r in range(16): k.e(f'v_add_f32 v{tmp+r}, 1.0, v{tmp+r}')
    for r in range(16): k.e(f'v_rcp_f32 v{tmp+r}, v{tmp+r}')
    for r in range(16): k.e(f'v_mul_f32 v{tmp+r}, v{u+r}, v{tmp+r}')
    for r in range(8): k.e(f'v_cvt_pk_bf16_f32 v{u+r}, v{tmp+2*r}, v{tmp+2*r+1}')
    k.e(f's_mul_i32 s{T0}, s{tbsrc}, 86')
    k.e(f's_lshl_b32 s{T1}, s{STILE}, 1')
    k.e(f's_add_u32 s{T0}, s{T0}, s{T1}')
    k.e(f's_lshl_b32 s{T0}, s{T0}, 10')
    k.e(f's_add_u32 s{T0}, s{T0}, {WS_F:#x}')
    pub_store([f'buffer_store_dwordx4 {v(u,4)}, v{VL16}, s[{R_WS}:{R_WS+3}], s{T0} offen',
               f'buffer_store_dwordx4 {v(u+4,4)}, v{VL16}, s[{R_WS}:{R_WS+3}], s{T0} offen offset:1024'])
lg2, lfd = k.label('g2'), k.label('fdone')
k.e(f's_lshl_b32 s{T7}, s{SCL}, 1')
k.e(f's_cmp_lt_u32 s{SW}, 4')
k.e(f's_cbranch_scc1 {lg2}')
k.e(f's_add_u32 s{T7}, s{T7}, s{SKH}')
k.e(f's_cmp_ge_u32 s{SJ}, 3')
k.e(f's_cselect_b32 s{T0}, s{SM}, 0')
k.e(f's_cmp_lg_u32 s{T0}, 0')
k.e(f's_cbranch_scc1 {lfd}')
lg1 = k.label('g1')
k.e(f's_branch {lg1}')
k.e(f'{lg2}:')
k.e(f'v_and_b32 v2, 31, v{VL}')
k.e('v_lshlrev_b32 v2, 3, v2')
k.e(f'v_add_u32 v2, {SCF}, v2')
k.e('ds_read_b64 v[6:7], v2 offset:256')
k.e('ds_read_b64 v[10:11], v2')
k.e(f's_add_u32 s{T7}, s{T7}, 1')
k.e('s_waitcnt lgkmcnt(0)')
gelu(U1, T7)
k.e(f's_sub_u32 s{T7}, s{T7}, 1')
k.e('v_mov_b32 v6, v10')
k.e('v_mov_b32 v7, v11')
k.e(f'{lg1}:')
gelu(U0, T7)
k.e(f'{lfd}:')
set_flag(2)
stamp()
k.e('s_barrier')
k.srd(R_B, P_W2, 1376*1024)
k.srd(R_C, P_B2, 1024)
k.srd(R_A, P_OUT, 2048*1024)
k.e(f'v_lshlrev_b32 v4, 3, v{VH}')
k.e(f's_and_b32 s{T0}, s{SROW}, 0x3ff')
k.e(f'buffer_load_dwordx2 v[32:33], v4, s[{R_C}:{R_C+3}], s{T0} offen')
k.e(f'buffer_load_dwordx2 v[34:35], v4, s[{R_C}:{R_C+3}], s{T0} offen offset:16')
SFG, SFLd, SWG, SWL = 74, 75, 76, 77
k.e(f's_mul_i32 s{SFG}, s{SCL}, {2*86*1024}')
k.e(f's_lshl_b32 s{SFLd}, s{SW}, 10')
k.e(f's_add_u32 s{SFG}, s{SFG}, s{SFLd}')
k.e(f's_add_u32 s{SFG}, s{SFG}, {WS_F:#x}')
k.e(f's_add_u32 s{SFLd}, s{SFLd}, 16384')
k.e(f's_lshl_b32 s{SWG}, s{SW}, 14')
k.e(f's_lshl_b32 s{T0}, s{SJ}, 7')
k.e(f's_add_u32 s{SWG}, s{SWG}, s{T0}')
k.e(f's_lshl_b32 s{SWL}, s{SW}, 11')
def issueF(c):
    sl = c % 4
    for u in range(2):
        k.e(f's_add_u32 m0, s{SFLd}, {sl*32768 + u*8192}')
        k.e(f's_add_u32 s{T3}, s{SFG}, {c*8192 + u*86*1024}')
        dma(VL16, R_WS, T3, 'sc1')
def issueW(c):
    sl = c % 4
    for u in range(2):
        k.e(f's_add_u32 m0, s{SWL}, {sl*32768 + u*1024}')
        k.e(f's_add_u32 s{T3}, s{SWG}, {c*131072 + u*8192}')
        dma(13, R_B, T3)
for c in range(4): issueW(c)
k.e(f's_lshl_b32 s{T0}, s{SKH}, 11')
addrA_128(6, 2, T0)
k.e('v_add_u32 v7, 0x10000, v6')
k.e(f's_lshl_b32 s{T0}, s{SN}, 13')
k.e(f's_lshl_b32 s{T1}, s{SKH}, 10')
k.e(f's_add_u32 s{T0}, s{T0}, s{T1}')
k.e(f's_add_u32 s{T0}, s{T0}, 16384')
k.e(f'v_add_u32 v8, s{T0}, v{VL16}')
k.e('v_add_u32 v9, 0x10000, v8')
poll_flags(2)
stamp()
for c in range(4): issueF(c)
for c in range(11):
    issued_hi = 3 if c == 0 else min(c+2, 10)
    n_after = sum(2 if cc <= 3 else 4 for cc in range(c+1, issued_hi+1))
    k.e(f's_waitcnt vmcnt({n_after})')
    k.e('s_barrier')
    sl = c % 4
    ni = 4 if c < 10 else 3
    vb = 8 if sl < 2 else 9
    va = 6 if sl < 2 else 7
    so = (sl % 2)*32768
    for i in range(ni):
        k.e(f'ds_read_b128 {v(B0+4*i,4)}, v{vb} offset:{so + 2*i*1024}')
        for t in range(2):
            k.e(f'ds_read_b64_tr_b16 {v(A0+4*i+2*t,2)}, v{va} offset:{so + (16*2*i+8*t)*128}')
    if c >= 1 and c+3 <= 10:
        issueF(c+3); issueW(c+3)
    for i in range(ni):
        k.e(f's_waitcnt lgkmcnt({3*(ni-1-i)})')
        mf(16, A0+4*i, B0+4*i, None if (c == 0 and i == 0) else 16)
stamp()
k.e('s_nop 3')
exch8(STG)
for r in range(4):
    k.e(f'v_lshlrev_b32 v{56+2*r}, 16, v{XRES+r}')
    k.e(f'v_and_b32 v{57+2*r}, 0xffff0000, v{XRES+r}')
    k.e(f'v_lshlrev_b32 v{64+2*r}, 16, v{32+r}')
    k.e(f'v_and_b32 v{65+2*r}, 0xffff0000, v{32+r}')
for r in range(8): k.e(f'v_add_f32 v{56+r}, v{56+r}, v{64+r}')
for r in range(8): k.e(f'v_add_f32 v{16+r}, v{16+r}, v{56+r}')
k.e('s_waitcnt lgkmcnt(0)')
for r in range(8): k.e(f'v_add_f32 v{16+r}, v{16+r}, v{48+r}')
for r in range(4): k.e(f'v_cvt_pk_bf16_f32 v{24+r}, v{16+2*r}, v{17+2*r}')
k.e('s_nop 1')
k.e('v_permlane32_swap_b32 v24, v26')
k.e('v_permlane32_swap_b32 v25, v27')
k.e(f'buffer_store_dwordx4 v[24:27], v111, s[{R_A}:{R_A+3}], s{SROW} offen')
stamp()
stamp_flush()
k.e(f'{LEND}:')
k.e('s_endpgm')
k.e(f'{lfb}:')
k.e(f's_mov_b32 s{T0}, {WS_K:#x}')
k.e(f'v_mov_b32 v{MA}, 0xff800000')
k.e(f'v_mov_b32 v{MB}, 0xff800000')
lf = k.label('fbl')
k.e(f'{lf}:')
k.e(f'buffer_load_dwordx4 {v(KB[0],4)}, v{VL16}, s[{R_WS}:{R_WS+3}], s{T0} offen sc1')
k.e('s_waitcnt vmcnt(0)')
mf(SA, KB[0], QA)
mf(SB, KB[0], QB)
k.e('s_nop 15')
for r in range(0, 16, 2): k.e(f'v_max3_f32 v{MA}, v{MA}, v{SA+r}, v{SA+r+1}')
for r in range(0, 16, 2): k.e(f'v_max3_f32 v{MB}, v{MB}, v{SB+r}, v{SB+r+1}')
k.e(f's_add_u32 s{T0}, s{T0}, 1024')
k.e(f's_cmp_lt_u32 s{T0}, {WS_K+65536:#x}')
k.e(f's_cbranch_scc1 {lf}')
k.e(f'v_mov_b32 v12, v{MA}')
k.e(f'v_mov_b32 v13, v{MB}')
k.e('s_nop 1')
k.e(f'v_permlane32_swap_b32 v{MA}, v12')
k.e(f'v_permlane32_swap_b32 v{MB}, v13')
k.e('s_nop 1')
k.e(f'v_max_f32 v{MA}, v{MA}, v12')
k.e(f'v_max_f32 v{MB}, v{MB}, v13')
for r in range(16): k.e(f'v_mov_b32 v{SB+r}, 0')
attention(True)
k.e(f's_branch {lepi}')

hdr = open('header.txt').read()
txt = emit_file(hdr, [], [k])
txt = txt.replace('.amdgcn_target', '; @launch grid=(256,1,1) block=(512,1,1) lds=163840\n.amdgcn_target', 1)
open(sys.argv[1], 'w').write(txt)
```

```python
import sys, math, struct, os
from asmlib import *

NAME = 'sequential_preLN__grouped_kv_mqa__dense_activation_gelu__prompt'
def f2u(x): return struct.unpack('<I', struct.pack('<f', x))[0]
OPT = os.environ.get('OPT', '').split(',')
STAMP = 'stamp' in OPT
def E(name, d): return int(os.environ.get(name, str(d)))

WS_K, WS_V, WS_MX, WS_G = 0x0, 0x10000, 0x20000, 0x21000
WS_CL, CB = 0x40000, 0x48000
C_O, C_H, C_S2, C_FL, C_F = 0x0, 0x10000, 0x20000, 0x24000, 0x28000
WS_ST = 0xE00000

QS = 0.25 * math.log2(math.e)
EPS = 1e-5
ONES_BF = 0x3F803F80
TSAFE = 50.0
GC0 = -2.0 * math.log2(math.e) * math.sqrt(2.0 / math.pi)
GC1 = GC0 * 0.044715
SPIN_LIMIT = 1 << 20
LSC = os.environ.get('LSC', 'sc1')

P_X, P_WQ, P_WK, P_WV, P_WO, P_W1, P_B1, P_W2, P_B2, P_OUT, P_DBG, P_WS = 4, 6, 8, 10, 12, 16, 18, 20, 22, 24, 26, 28
R_G, R_CL, R_A, R_B, R_C, R_D = 32, 36, 40, 44, 80, 84
SW, SCL, SJ, SM, SN, SKH, SFAST, SONE = 50, 51, 52, 53, 54, 55, 56, 57
STILE, SFRAG, SROW, SFLW, SSPIN, SW10 = 58, 59, 60, 61, 62, 63
T0, T1, T2, T3, T4, T5, T6, T7 = 64, 65, 66, 67, 68, 69, 70, 71
SMASK = 72
SW1G, SW1L, SPF, SWG, SWL = 74, 75, 76, 77, 78
VL, VL16, VH, VOW, VROW, XRES = 1, 4, 5, 6, 7, 8

k = K(NAME + '_kernel')
LEND = 'L_end'
stamp_n = [0]
def stamp(fixed=None):
    if not STAMP: return
    if fixed is None:
        idx = stamp_n[0]; stamp_n[0] += 1
    else: idx = fixed
    lab = k.label('st')
    k.e(f's_and_b32 s96, s{SW}, 3')
    k.e(f's_cmp_lg_u32 s96, {E("SWV", 0)}')
    k.e(f's_cbranch_scc1 {lab}')
    k.e('s_memrealtime s[90:91]')
    k.e('s_memtime s[94:95]')
    k.e('s_waitcnt lgkmcnt(0)')
    k.e(f'v_writelane_b32 v126, s90, {idx}')
    k.e(f'v_writelane_b32 v127, s94, {idx}')
    k.e(f'{lab}:')
def stamp_flush():
    if not STAMP: return
    lab = k.label('st')
    k.e(f's_and_b32 s96, s{SW}, 3')
    k.e(f's_cmp_lg_u32 s96, {E("SWV", 0)}')
    k.e(f's_cbranch_scc1 {lab}')
    k.e(f's_lshl_b32 s92, s2, 10')
    k.e(f's_lshl_b32 s96, s{SN}, 9')
    k.e('s_add_u32 s92, s92, s96')
    k.e(f's_add_u32 s92, s92, {WS_ST}')
    k.e(f'v_lshlrev_b32 v2, 3, v{VL}')
    k.e('v_add_u32 v2, s92, v2')
    k.e(f'global_store_dwordx2 v2, v[126:127], s[{P_WS}:{P_WS+1}]')
    k.e(f'{lab}:')

def srd(r): return f's[{r}:{r+3}]'
def dma(voff, r, lds_s, lds_off, g_s, g_off, sc=''):
    k.e(f's_add_u32 m0, s{lds_s}, {lds_off}')
    k.e(f's_add_u32 s{T7}, s{g_s}, {g_off}')
    k.e(f'buffer_load_dwordx4 v{voff}, {srd(r)}, s{T7} offen {sc} lds')
def R(t, a, n): return v(a, n) if t == 'v' else a_(a, n)
def mf(d, a, b, c=None, at='v', bt='v'):
    C = '0' if c is None else v(c, 16)
    k.e(f'v_mfma_f32_32x32x16_bf16 {v(d,16)}, {R(at,a,4)}, {R(bt,b,4)}, {C}')
def pub_store(ins):
    l1, l2 = k.label('slow'), k.label('pj')
    k.e(f's_cmp_eq_u32 s{SFAST}, 0')
    k.e(f's_cbranch_scc1 {l1}')
    for i in ins: k.e(i)
    k.e(f's_branch {l2}')
    k.e(f'{l1}:')
    for i in ins: k.e(i + ' sc1')
    k.e(f'{l2}:')
def set_flag(phase, cnt=0):
    k.e('v_mov_b32 v2, 0')
    k.e('v_mov_b32 v3, 1')
    k.e(f's_waitcnt vmcnt({cnt})')
    k.e('s_mov_b64 exec, 1')
    pub_store([f'buffer_store_dword v3, v2, {srd(R_CL)}, s{SFLW} offen offset:{phase*256}'])
    k.e('s_mov_b64 exec, -1')
def poll_flags(phase):
    lp = k.label('poll')
    k.e(f'v_lshlrev_b32 v2, 2, v{VL}')
    k.e(f's_mov_b32 s{T0}, {C_FL:#x}')
    k.e(f'{lp}:')
    k.e(f'buffer_load_dword v3, v2, {srd(R_CL)}, s{T0} offen offset:{phase*256} sc1')
    k.e(f's_sub_u32 s{SSPIN}, s{SSPIN}, 1')
    k.e(f's_cbranch_scc1 {LEND}')
    k.e('s_waitcnt vmcnt(0)')
    k.e('v_cmp_ne_u32 vcc, 1, v3')
    k.e('s_nop 1')
    k.e('s_cmp_lg_u64 vcc, 0')
    k.e(f's_cbranch_scc1 {lp}')
def mean_rstd(vs, vq):
    k.e(f'v_mul_f32 v{vs}, {f2u(1/512):#x}, v{vs}')
    k.e(f'v_mul_f32 v{vq}, {f2u(1/512):#x}, v{vq}')
    k.e(f'v_fma_f32 v{vq}, -v{vs}, v{vs}, v{vq}')
    k.e(f'v_max_f32 v{vq}, 0, v{vq}')
    k.e(f'v_add_f32 v{vq}, {f2u(EPS):#x}, v{vq}')
    k.e(f'v_rsq_f32 v{vq}, v{vq}')
    k.e('s_nop 0')
def addrA_128(dst, hshift, base_sreg, msw=True):
    k.e(f'v_bfe_u32 v2, v{VL}, 2, 2')
    k.e(f'v_lshl_add_u32 v3, v{VH}, {hshift}, v2')
    k.e('v_lshrrev_b32 v2, 1, v2')
    if msw: k.e(f'v_xor_b32 v2, s{SM}, v2')
    k.e('v_lshlrev_b32 v2, 6, v2')
    k.e('v_lshl_add_u32 v2, v3, 7, v2')
    k.e(f'v_bfe_u32 v3, v{VL}, 4, 1')
    k.e('v_lshl_add_u32 v2, v3, 5, v2')
    k.e(f'v_and_b32 v3, 3, v{VL}')
    k.e('v_lshl_add_u32 v2, v3, 3, v2')
    k.e(f'v_add_u32 v{dst}, s{base_sreg}, v2')
def wchunk(r, ldsoff, c, sc=''):
    for u in range(2):
        dma(VOW, r, SWL, ldsoff + u*1024, SWG, c*131072 + u*8192, sc)

SA, SB, OA, OB = 16, 32, 48, 64
QA, QB = 80, 84
KB = [88, 92]; VB = [96, 104]
VIDX, VK, VV, VW1, VST, MA, MB, VPF = 112, 113, 114, 115, 116, 117, 118, 119
VQ2 = MA
CSA = 122
STG = 131072

k.e('s_load_dwordx16 s[4:19], s[0:1], 0')
k.e('s_load_dwordx8 s[20:27], s[0:1], 64')
k.e('s_load_dwordx2 s[28:29], s[0:1], 96')
k.e('s_cmp_ge_u32 s2, 256')
k.e(f's_cbranch_scc1 {LEND}')
k.e('v_lshrrev_b32 v2, 6, v0')
k.e(f'v_and_b32 v{VL}, 63, v0')
k.e(f'v_readfirstlane_b32 s{SW}, v2')
k.e(f's_and_b32 s{T0}, s2, 7')
k.e(f's_lshr_b32 s{T1}, s2, 3')
k.e(f's_and_b32 s{SJ}, s{T1}, 7')
k.e(f's_lshr_b32 s{T1}, s{T1}, 3')
k.e(f's_lshl_b32 s{T0}, s{T0}, 2')
k.e(f's_add_u32 s{SCL}, s{T0}, s{T1}')
k.e(f's_and_b32 s{SM}, s{SW}, 1')
k.e(f's_lshr_b32 s{SN}, s{SW}, 2')
k.e(f's_bfe_u32 s{SKH}, s{SW}, 0x10001')
k.e(f'v_lshlrev_b32 v{VL16}, 4, v{VL}')
k.e(f'v_lshrrev_b32 v{VH}, 5, v{VL}')
if STAMP:
    k.e('v_mov_b32 v126, -1'); k.e('v_mov_b32 v127, -1')
XB, WB, KVB = 0, 65536, 131072
SKC, SNX = 79, 88
k.e(f's_and_b32 s{SKC}, s{SW}, 3')
k.e(f's_cmp_eq_u32 s{SJ}, 1')
k.e(f's_cselect_b32 s{T0}, 1, 0')
k.e(f's_xor_b32 s{SNX}, s{SN}, s{T0}')
k.e(f'v_lshrrev_b32 v2, 4, v{VL}')
k.e(f'v_and_b32 v3, 15, v{VL}')
k.e('v_xor_b32 v3, v3, v2')
k.e('v_lshlrev_b32 v3, 4, v3')
k.e('v_lshl_add_u32 v16, v2, 10, v3')
for c in range(1, 4): k.e(f'v_xor_b32 v{16+c}, {c*4096 + c*64:#x}, v16')
k.e(f'v_lshrrev_b32 v2, 3, v{VL}')
k.e(f'v_and_b32 v3, 7, v{VL}')
k.e(f'v_lshrrev_b32 v13, 2, v{VL}')
k.e('v_and_b32 v13, 4, v13')
k.e('v_xor_b32 v3, v3, v13')
k.e('v_lshlrev_b32 v3, 4, v3')
k.e(f'v_lshl_add_u32 v{VOW}, v2, 10, v3')
k.e(f's_lshl_b32 s{T4}, s{SCL}, 16')
k.e(f's_lshl_b32 s{T1}, s{SNX}, 15')
k.e(f's_add_u32 s{T4}, s{T4}, s{T1}')
k.e(f's_lshl_b32 s{T1}, s{SKC}, 8')
k.e(f's_add_u32 s{T4}, s{T4}, s{T1}')
k.e(f's_lshl_b32 s{T5}, s{SKC}, 14')
k.e(f's_lshl_b32 s{T1}, s{SNX}, 13')
k.e(f's_add_u32 s{T5}, s{T5}, s{T1}')
k.e(f's_lshl_b32 s{T6}, s{SKC}, 12')
k.e(f's_lshl_b32 s{T3}, s{SJ}, 7')
k.e('s_waitcnt lgkmcnt(0)')
stamp()
k.srd(R_A, P_X, 2048*1024)
for t in range(8): dma(16 + (t & 3), R_A, T5, XB + t*1024, T4, (t >> 2)*16384)
lnp, lp47, lsetup = k.label('nprod'), k.label('p47'), k.label('setup')
k.srd(R_D, P_WQ, 512*1024)
k.e(f's_cmp_ge_u32 s{SJ}, 2')
k.e(f's_cbranch_scc1 {lnp}')
k.e(f's_cmp_ge_u32 s{SW}, 4')
k.e(f's_cbranch_scc1 {lp47}')
k.srd(R_B, P_WK, 16384)
k.srd(R_C, P_WV, 16384)
for u in range(4): dma(VL16, R_B, T6, KVB + u*1024, T6, u*1024)
for u in range(4): dma(VL16, R_C, T6, KVB + 16384 + u*1024, T6, u*1024)
k.e(f's_branch {lsetup}')
k.e(f'{lp47}:')
k.e(f's_lshl_b32 s{T0}, s{SKC}, 16')
k.e(f's_add_u32 s{T0}, s{T0}, s{T3}')
k.e(f's_lshl_b32 s{T1}, s{SKC}, 13')
for u in range(8): dma(VOW, R_D, T1, WB + u*1024, T0, u*8192)
k.e(f's_branch {lsetup}')
k.e(f'{lnp}:')
k.e(f's_lshl_b32 s{T0}, s{SW}, 15')
k.e(f's_add_u32 s{T0}, s{T0}, s{T3}')
k.e(f's_lshl_b32 s{T1}, s{SW}, 12')
for hh in range(2):
    for u in range(4): dma(VOW, R_D, T1, WB + hh*32768 + u*1024, T0, hh*262144 + u*8192)
k.e(f'{lsetup}:')
stamp(23)
k.e(f'v_and_b32 v3, 15, v{VL}')
k.e(f'v_xor_b32 v2, v{VH}, v3')
k.e('v_lshlrev_b32 v2, 4, v2')
k.e(f'v_and_b32 v3, 31, v{VL}')
k.e('v_lshl_add_u32 v94, v3, 8, v2')
k.e(f'v_add_u32 v80, s{T5}, v94')
for i in range(1, 8): k.e(f'v_xor_b32 v{80+i}, {i*32}, v80')
k.e(f'v_lshlrev_b32 v2, 4, v{VH}')
k.e(f'v_lshl_add_u32 v{VROW}, v3, 10, v2')
k.e(f's_mov_b32 s{SONE}, {ONES_BF:#x}')
ACC, CQ, BV, AB = 16, 32, 48, 80
PB, PA, PKV = 8, 12, 14
VS1, VS2 = 92, 93
k.e(f'v_mov_b32 v{VS1}, 0')
k.e(f'v_mov_b32 v{VS2}, 0')
k.e(f'v_mov_b32 v120, s{SONE}')
k.e(f'v_mov_b32 v121, s{SONE}')
ONES2 = 'v[120:121]'
k.e(f's_lshl_b32 s{T0}, s{SKH}, 5')
k.e(f'v_xor_b32 v2, s{T0}, v94')
k.e(f's_lshl_b32 s{T0}, s{SN}, 13')
k.e(f'v_add_u32 v{PB}, s{T0}, v2')
k.e(f'v_xor_b32 v{PB+1}, 64, v{PB}')
k.e(f'v_xor_b32 v{PB+2}, 0x80, v{PB}')
k.e(f'v_xor_b32 v{PB+3}, 0xc0, v{PB}')
k.e(f's_lshl_b32 s{T0}, s{SKH}, 11')
k.e(f's_add_u32 s{T0}, s{T0}, {WB}')
addrA_128(PA, 3, T0)
k.e(f'v_bfe_u32 v2, v{VL}, 2, 2')
k.e(f'v_lshl_add_u32 v2, v{VH}, 3, v2')
k.e('v_lshlrev_b32 v2, 5, v2')
k.e(f'v_bfe_u32 v3, v{VL}, 4, 1')
k.e('v_lshl_add_u32 v2, v3, 14, v2')
k.e(f'v_and_b32 v3, 3, v{VL}')
k.e('v_lshl_add_u32 v2, v3, 3, v2')
k.e(f's_add_u32 s{T6}, s{T6}, {KVB}')
k.e(f'v_add_u32 v{PKV}, s{T6}, v2')
k.srd(R_G, P_WS, WS_G)
k.e(f's_mul_i32 s{T0}, s{SCL}, {CB:#x}')
k.e(f's_add_u32 s{T0}, s{T0}, {WS_CL:#x}')
k.e(f's_add_u32 s{R_CL}, s{P_WS}, s{T0}')
k.e(f's_addc_u32 s{R_CL+1}, s{P_WS+1}, 0')
k.e(f's_and_b32 s{R_CL+1}, s{R_CL+1}, 0xffff')
k.e(f's_mov_b32 s{R_CL+2}, {CB:#x}')
k.e(f's_mov_b32 s{R_CL+3}, 0x20000')
k.srd(R_B, P_W1, 512*2752)
k.srd(R_C, P_W2, 1376*1024)
k.e(f's_mov_b32 s{SSPIN}, {SPIN_LIMIT}')
k.e(f's_lshl_b32 s{SW10}, s{SW}, 10')
k.e(f's_lshl_b32 s{SWG}, s{SW}, 14')
k.e(f's_add_u32 s{SWG}, s{SWG}, s{T3}')
k.e(f's_lshl_b32 s{SWL}, s{SW}, 11')
k.e(f's_lshl_b32 s{SFLW}, s{SJ}, 5')
k.e(f's_lshl_b32 s{T1}, s{SW}, 2')
k.e(f's_add_u32 s{SFLW}, s{SFLW}, s{T1}')
k.e(f's_add_u32 s{SFLW}, s{SFLW}, {C_FL:#x}')
k.e(f's_lshl_b32 s{T1}, s{SJ}, 2')
k.e(f's_lshl_b32 s{T2}, s{SM}, 1')
k.e(f's_add_u32 s{T1}, s{T1}, s{T2}')
k.e(f's_add_u32 s{T1}, s{T1}, s{SKH}')
k.e(f's_lshl_b32 s{SFRAG}, s{SN}, 5')
k.e(f's_add_u32 s{SFRAG}, s{SFRAG}, s{T1}')
k.e(f's_lshl_b32 s{SFRAG}, s{SFRAG}, 10')
k.e(f's_lshl_b32 s{T0}, s{SCL}, 1')
k.e(f's_add_u32 s{T0}, s{T0}, s{SN}')
k.e(f's_lshl_b32 s{SROW}, s{T0}, 15')
k.e(f's_lshl_b32 s{T1}, s{T1}, 5')
k.e(f's_add_u32 s{SROW}, s{SROW}, s{T1}')
k.e(f'v_lshlrev_b32 v{VPF}, 7, v{VL}')
def att_setup():
    k.e(f'v_mov_b32 v{VB[0]}, 0')
    k.e('s_mov_b32 exec_lo, 0x11')
    k.e('s_mov_b32 exec_hi, 0x11')
    k.e(f'v_mov_b32 v{VB[0]}, s{SONE}')
    k.e('s_mov_b64 exec, -1')
    for r in range(VB[0]+1, VB[1]+8): k.e(f'v_mov_b32 v{r}, v{VB[0]}')
    k.e(f'v_mov_b32 v{VIDX}, 0xdddddddd')
    k.e(f's_lshl_b32 s{T0}, s{SKH}, 10')
    k.e(f'v_add_u32 v{VK}, s{T0}, v{VL16}')
    k.e(f'v_and_b32 v2, 15, v{VL}')
    k.e(f'v_lshl_add_u32 v2, v{VH}, 4, v2')
    k.e(f's_add_u32 s{T0}, s{T0}, 65536')
    k.e(f'v_lshl_add_u32 v{VV}, v2, 4, s{T0}')
    k.e(f's_mov_b32 s{SMASK}, 0xffff0000')
    k.e(f's_mov_b32 s{SMASK+1}, 0xffff0000')
    k.e(f's_mul_i32 s{STILE}, s{SJ}, 5')
    k.e(f's_min_u32 s{T0}, s{SJ}, 3')
    k.e(f's_add_u32 s{STILE}, s{STILE}, s{T0}')
    k.e(f's_add_u32 s{T0}, s{SM}, 4')
    k.e(f's_cmp_lt_u32 s{SW}, 4')
    k.e(f's_cselect_b32 s{T0}, s{SW}, s{T0}')
    k.e(f's_add_u32 s{STILE}, s{STILE}, s{T0}')
    k.e(f'v_lshrrev_b32 v2, 2, v{VL}')
    k.e(f'v_and_b32 v3, 3, v{VL}')
    k.e('v_lshlrev_b32 v3, 4, v3')
    k.e(f's_movk_i32 s{T0}, 2752')
    k.e(f'v_mad_u32_u24 v{VW1}, v2, s{T0}, v3')
    k.e(f'v_bfe_u32 v2, v{VL}, 2, 2')
    k.e(f'v_lshl_add_u32 v2, v{VH}, 2, v2')
    k.e('v_lshlrev_b32 v2, 6, v2')
    k.e('v_lshrrev_b32 v3, 1, v3')
    k.e('v_add_u32 v2, v2, v3')
    k.e(f'v_bfe_u32 v3, v{VL}, 4, 1')
    k.e('v_lshl_add_u32 v2, v3, 5, v2')
    k.e(f's_lshl_b32 s{SW1L}, s{SW}, 12')
    k.e(f's_add_u32 s{SW1L}, s{SW1L}, {STG}')
    k.e(f'v_add_u32 v{VST}, s{SW1L}, v2')
    k.e(f's_lshl_b32 s{SW1G}, s{STILE}, 6')
att_setup()
stamp(24)
SCW = KVB + 16384
def m4(d, b, bt, first, ones=None):
    k.e(f'v_mfma_f32_4x4x4_16b_bf16 {v(d,4)}, {ones or ONES2}, {R(bt,b,2)}, {"0" if first else v(d,4)}')
def st_reads():
    for i in range(8): k.e(f'ds_read_b128 {v(BV+4*i,4)}, v{80+i}')
def st_dots(lo, hi):
    for q in range(BV+4*lo, BV+4*hi):
        k.e(f'v_dot2c_f32_bf16 v{VS1}, s{SONE}, v{q}')
        k.e(f'v_dot2c_f32_bf16 v{VS2}, v{q}, v{q}')
def st_combine():
    k.e(f's_lshl_b32 s{T0}, s{SNX}, 8')
    k.e(f's_add_u32 s{T0}, s{T0}, s{T6}')
    k.e(f's_add_u32 s{T0}, s{T0}, 16384')
    k.e(f'v_permlane32_swap_b32 v{VS1}, v{VS2}')
    k.e(f'v_lshl_add_u32 v95, v{VL}, 2, s{T0}')
    k.e(f'v_add_f32 v{VS1}, v{VS1}, v{VS2}')
def stats_issue(d, nreg):
    k.e(f'v_and_b32 v2, 31, v{VL}')
    k.e(f's_lshl_b32 s{T0}, s{nreg}, 8')
    k.e(f's_add_u32 s{T0}, s{T0}, {SCW}')
    k.e(f'v_lshl_add_u32 v2, v2, 2, s{T0}')
    for q in range(4):
        k.e(f'ds_read_b32 v{d+2*q}, v2 offset:{q*4096}')
        k.e(f'ds_read_b32 v{d+2*q+1}, v2 offset:{q*4096+128}')
def stats_fin(d):
    for e in range(2):
        k.e(f'v_add_f32 v{d+e}, v{d+e}, v{d+2+e}')
        k.e(f'v_add_f32 v{d+4+e}, v{d+4+e}, v{d+6+e}')
    for e in range(2): k.e(f'v_add_f32 v{d+e}, v{d+e}, v{d+4+e}')
    mean_rstd(d, d+1)
QB_, QA_ = 32, 48
def q_half(hf, hooks={}, pre=0):
    def rd(i):
        k.e(f'ds_read_b128 {a_(QB_+4*(i%4),4)}, v{PB+(i&3)} offset:{(i>>2)*16384}')
        for t in range(2):
            k.e(f'ds_read_b64_tr_b16 {a_(QA_+4*(i%4)+2*t,2)}, v{PA} offset:{i*4096 + t*512}')
    i0 = 8*hf
    rd(i0); rd(i0+1)
    for i in range(i0, i0+8, 2):
        if i+2 < i0+8:
            if pre and i == i0: k.e('s_waitcnt lgkmcnt(6)')
            rd(i+2); rd(i+3)
            k.e('s_waitcnt lgkmcnt(6)')
        else:
            k.e('s_waitcnt lgkmcnt(0)')
        for e in range(2):
            a = QA_+4*((i+e)%4)
            m4(CQ+8*e, a, 'a', i == 0)
            m4(CQ+8*e+4, a+2, 'a', i == 0)
        for e in range(2):
            mf(ACC, QA_+4*((i+e)%4), QB_+4*((i+e)%4), None if i+e == 0 else ACC, at='a', bt='a')
        if i in hooks: hooks[i]()
def q_stats():
    stats_fin(80)
    k.e(f'v_mul_f32 v92, {f2u(QS):#x}, v81')
    k.e('v_sub_f32 v80, 0, v80')
    k.e('v_cvt_pk_bf16_f32 v88, v80, v80')
    k.e('v_mov_b32 v90, 0')
    k.e('v_and_b32 v81, 0xffff0000, v88')
    k.e('v_sub_f32 v81, v80, v81')
    k.e('v_mov_b32 v91, 0')
    k.e('v_cvt_pk_bf16_f32 v89, v81, v90')
def zero_o():
    for r in range(4): k.e(f'v_mov_b32 v{KB[1]+r}, 0') if False else None
lcrit, lq, lq1, lqx, lFV = k.label('crit'), k.label('qproj'), k.label('q1'), k.label('qx'), k.label('FV')
k.e(f's_cmp_ge_u32 s{SJ}, 2')
k.e(f's_cselect_b32 s{T0}, 4, s{SW}')
k.e(f's_cmp_lt_u32 s{T0}, 4')
k.e(f's_cbranch_scc1 {lcrit}')
k.e('s_waitcnt vmcnt(8)')
st_reads()
k.e('s_waitcnt lgkmcnt(4)')
st_dots(0, 4)
k.e('s_waitcnt lgkmcnt(0)')
st_dots(4, 8)
st_combine()
stamp()
lpo = k.label('pord')
k.e(f's_cmp_lt_u32 s{SJ}, 2')
k.e(f's_cbranch_scc1 {lpo}')
k.e('s_waitcnt vmcnt(4)')
k.e('s_barrier')
k.e(f'ds_write_b32 v95, v{VS1}')
k.e(f's_branch {lq}')
k.e(f'{lpo}:')
k.e(f's_lshl_b32 s{T0}, s{SKC}, 16')
k.e(f's_add_u32 s{T0}, s{T0}, s{T3}')
k.e(f's_lshl_b32 s{T1}, s{SKC}, 13')
k.e('s_waitcnt vmcnt(0)')
k.e('s_barrier')
k.e(f'ds_write_b32 v95, v{VS1}')
for u in range(8): dma(VOW, R_D, T1, WB + 32768 + u*1024, T0, 262144 + u*8192)
k.e(f's_branch {lq}')
k.e(f'{lcrit}:')
k.e('s_setprio 3')
FA = 0
k.e('s_waitcnt vmcnt(8)')
st_reads()
k.e('s_waitcnt lgkmcnt(4)')
st_dots(0, 4)
k.e('s_waitcnt vmcnt(0) lgkmcnt(0)')
for i in range(8):
    if i == 7: k.e('s_waitcnt lgkmcnt(8)')
    for t in range(2):
        k.e(f'ds_read_b64_tr_b16 {a_(FA+4*i+2*t,2)}, v{PKV} offset:{i*512 + t*128}')
st_dots(4, 8)
k.e('s_waitcnt lgkmcnt(0)')
for i in range(16): m4(CQ+4*(i%4), FA+2*i, 'a', i < 4)
for i in range(8): mf(ACC, FA+4*i, BV+4*i, None if i == 0 else ACC, at='a')
st_combine()
k.e(f'ds_write_b32 v95, v{VS1}')
k.e(f'v_add_f32 v{CQ}, v{CQ}, v{CQ+4}')
k.e(f'v_add_f32 v{CQ+8}, v{CQ+8}, v{CQ+12}')
k.e(f'v_add_f32 v{CQ}, v{CQ}, v{CQ+8}')
k.e(f'v_mov_b32 v{CQ+1}, v{CQ}')
k.e(f's_add_u32 s{T0}, s{T6}, {16384+512}')
k.e(f'v_lshl_add_u32 v3, v{VL}, 2, s{T0}')
k.e(f'v_permlane32_swap_b32 v{CQ}, v{CQ+1}')
k.e(f'v_add_u32 v2, s{T6}, v{VL16}')
k.e(f'v_add_f32 v{CQ}, v{CQ}, v{CQ+1}')
k.e(f'ds_write_b32 v3, v{CQ}')
for q in range(4): k.e(f'ds_write_b128 v2, {v(ACC+4*q,4)} offset:{q*1024}')
k.e(f's_lshl_b32 s{T4}, s{SCL}, 1')
k.e(f's_add_u32 s{T4}, s{T4}, s{SJ}')
k.e(f'v_add_u32 v90, s{SWL}, v{VL16}')
k.e(f'v_add_u32 v90, {KVB}, v90')
k.e(f's_lshl_b32 s{T0}, s{SW}, 6')
k.e(f's_add_u32 s{T0}, s{T0}, {SCW+512}')
k.e(f'v_lshl_add_u32 v91, v{VH}, 4, s{T0}')
k.e('s_waitcnt lgkmcnt(0)')
stamp(18)
k.e('s_barrier')
stamp(19)
k.e(f's_cmp_ge_u32 s{SW}, 2')
k.e(f's_cbranch_scc1 {lq}')
stats_issue(80, SJ)
for p in range(3):
    for q in range(2): k.e(f'ds_read_b128 {v(16+8*p+4*q,4)}, v90 offset:{p*4096 + q*1024}')
k.e('s_waitcnt lgkmcnt(5)')
for q in range(2): k.e(f'ds_read_b128 {v(40+4*q,4)}, v90 offset:{3*4096 + q*1024}')
for p in range(4):
    for q in range(2): k.e(f'ds_read_b128 {v(48+8*p+4*q,4)}, v91 offset:{p*4096 + q*32}')
stats_fin(80)
k.e('s_waitcnt lgkmcnt(8)')
for r in range(8): k.e(f'v_add3_u32 v0, v0, v0, v0') if False else None
for r in range(16): k.e(f'v_add_f32 v{16+r}, v{16+r}, v{32+r}')
for r in range(8): k.e(f'v_add_f32 v{16+r}, v{16+r}, v{24+r}')
for p in range(4):
    k.e(f's_waitcnt lgkmcnt({6-2*p})')
    for r in range(8): k.e(f'v_fma_f32 v{16+r}, -v80, v{48+8*p+r}, v{16+r}')
for r in range(8): k.e(f'v_mul_f32 v{16+r}, v81, v{16+r}')
PK = 84
for r in range(4): k.e(f'v_cvt_pk_bf16_f32 v{PK+r}, v{16+2*r}, v{17+2*r}')
k.e(f's_lshl_b32 s{T0}, s{T4}, 10')
lfj = k.label('fj')
k.e(f's_cmp_eq_u32 s{SW}, 1')
k.e(f's_cbranch_scc1 {lFV}')
k.e(f'buffer_store_dwordx4 {v(PK,4)}, v{VL16}, {srd(R_G)}, s{T0} offen sc1')
k.e(f'{lfj}:')
k.e('v_mul_f32 v88, v16, v16')
k.e('v_mul_f32 v89, v17, v17')
for r in range(2, 8): k.e(f'v_fmac_f32 v{88+(r&1)}, v{16+r}, v{16+r}')
k.e('v_add_f32 v88, v88, v89')
k.e(f's_lshl_b32 s{T0}, s{T4}, 4')
k.e('v_mov_b32 v89, v88')
k.e(f's_lshl_b32 s{T1}, s{SW}, 3')
k.e(f's_add_u32 s{T0}, s{T0}, s{T1}')
k.e('v_permlane32_swap_b32 v88, v89')
k.e(f's_add_u32 s{T0}, s{T0}, {WS_MX:#x}')
k.e('v_add_f32 v88, v88, v89')
k.e('v_and_b32 v88, 0x7fffffff, v88')
k.e(f'v_lshrrev_b32 v95, 2, v{VL}')
k.e('s_nop 0')
for sh in (8, 4, 2, 1):
    k.e(f'v_max_u32_dpp v88, v88, v88 row_ror:{sh} row_mask:0xf bank_mask:0xf')
    if sh > 1: k.e('s_nop 1')
k.e('s_mov_b64 exec, 0x10001')
k.e(f'buffer_store_dword v88, v95, {srd(R_G)}, s{T0} offen sc1')
k.e('s_mov_b64 exec, -1')
stamp(20)
k.e('v_mov_b32 v3, 0')
k.e('v_mov_b32 v15, 1')
k.e('v_mov_b32 v14, 0')
k.e('s_waitcnt vmcnt(0)')
k.e('s_barrier')
lna = k.label('noatom')
k.e(f's_cmp_lg_u32 s{SW}, 0')
k.e(f's_cbranch_scc1 {lna}')
k.e('s_mov_b64 exec, 1')
k.e(f'global_atomic_add v14, v3, v15, s[{P_DBG}:{P_DBG+1}] sc0 sc1')
k.e('s_mov_b64 exec, -1')
k.e(f'{lna}:')
stamp(21)
q_half(0)
k.e('s_waitcnt vmcnt(0)')
k.e(f'v_readfirstlane_b32 s{T0}, v14')
stamp(22)
k.e('s_nop 3')
k.e(f's_cmp_lg_u32 s{T0}, 63')
k.e(f's_cbranch_scc1 {lq1}')
k.e('s_mov_b64 exec, 1')
k.e(f'global_store_dword v3, v15, s[{P_DBG}:{P_DBG+1}] offset:192 sc1')
k.e('s_mov_b64 exec, -1')
k.e(f's_branch {lq1}')
k.e(f'{lFV}:')
SC_VT = SCW + 1024
k.e(f'v_and_b32 v2, 31, v{VL}')
k.e('v_lshlrev_b32 v2, 5, v2')
k.e(f'v_lshl_add_u32 v2, v{VH}, 3, v2')
k.e(f'v_add_u32 v2, {SC_VT}, v2')
k.e(f'ds_write_b64 v2, {v(PK,2)}')
k.e(f'ds_write_b64 v2, {v(PK+2,2)} offset:16')
k.e(f'v_lshrrev_b32 v2, 4, v{VL}')
k.e('v_lshlrev_b32 v2, 8, v2')
k.e(f'v_and_b32 v3, 15, v{VL}')
k.e('v_lshl_add_u32 v2, v3, 3, v2')
k.e(f'v_add_u32 v2, {SC_VT}, v2')
k.e(f's_add_u32 s{T0}, s{T0}, {WS_V:#x}')
k.e('s_waitcnt lgkmcnt(0)')
k.e(f'ds_read_b64_tr_b16 {a_(0,2)}, v2')
k.e(f'ds_read_b64_tr_b16 {a_(2,2)}, v2 offset:128')
k.e('s_waitcnt lgkmcnt(0)')
k.e(f'buffer_store_dwordx4 {a_(0,4)}, v{VL16}, {srd(R_G)}, s{T0} offen sc1')
k.e(f's_branch {lfj}')
k.e(f'{lq}:')
k.e('s_setprio 0')
stamp()
q_half(0)
k.e('s_waitcnt vmcnt(0)')
k.e('s_barrier')
k.e(f'{lq1}:')
stats_issue(80, SN)
def hk_a():
    q_stats()
def hk_b():
    k.e('s_barrier')
    for r in range(OA, OA+16): k.e(f'v_mov_b32 v{r}, 0')
def hk_c():
    for r in range(OB, OB+16): k.e(f'v_mov_b32 v{r}, 0')
    k.srd(R_D, P_WO, 512*1024)
q_half(1, {8: hk_a, 10: hk_c, 12: hk_b}, pre=8)
stamp(32)
k.e('s_setprio 0')
k.e(f'v_add_u32 v12, s{SW1L}, v{VL16}')
k.e('v_xor_b32 v13, 0x2000, v12')
k.e(f'v_lshlrev_b32 v2, 8, v{VL}')
k.e(f'v_add_f32 v{CQ}, v{CQ}, v{CQ+4}')
k.e(f'v_add_f32 v{CQ+8}, v{CQ+8}, v{CQ+12}')
k.e('v_mov_b32 v86, 0')
k.e(f'v_add_f32 v{CQ}, v{CQ}, v{CQ+8}')
k.e('v_mov_b32 v87, 0')
k.e(f'v_cvt_pk_bf16_f32 v85, v{CQ}, v86')
k.e('v_lshlrev_b32 v84, 16, v85')
k.e(f'v_sub_f32 v84, v{CQ}, v84')
k.e(f'v_cvt_pk_bf16_f32 v84, v{CQ}, v84')
k.e('s_mov_b64 exec, 7')
k.e(f'buffer_store_dword v86, v2, {srd(R_CL)}, s{SFLW} offen sc1')
k.e('s_mov_b64 exec, -1')
mf(ACC, 84, 88, ACC)
k.e(f'v_mov_b32 v{VQ2}, 0')
k.e(f'v_mov_b32 v{MB}, 0')
k.e('s_nop 7')
k.e('s_nop 1')
for q in range(4): k.e(f'ds_write_b128 v12, {v(ACC+4*q,4)} offset:{q*1024}')
k.e('s_waitcnt lgkmcnt(0)')
k.e('s_barrier')
for q in range(4): k.e(f'ds_read_b128 {v(32+4*q,4)}, v13 offset:{q*1024}')
for q in range(4):
    k.e(f's_waitcnt lgkmcnt({3-q})')
    for r in range(4*q, 4*q+4, 2): k.e(f'v_pk_add_f32 {v(ACC+r,2)}, {v(ACC+r,2)}, {v(32+r,2)}')
for r in range(0, 16, 2): k.e(f'v_pk_mul_f32 {v(ACC+r,2)}, v[92:93], {v(ACC+r,2)} op_sel:[0,0] op_sel_hi:[0,1]')
for r in range(8): k.e(f'v_cvt_pk_bf16_f32 v{QA+r}, v{ACC+2*r}, v{ACC+2*r+1}')
for r in range(4):
    k.e(f'v_dot2c_f32_bf16 v{VQ2}, v{QA+r}, v{QA+r}')
    k.e(f'v_dot2c_f32_bf16 v{MB}, v{QB+r}, v{QB+r}')
k.e('s_nop 2')
k.e(f'v_permlane32_swap_b32 v{VQ2}, v{MB}')
k.e('s_nop 1')
k.e(f'v_add_f32 v{VQ2}, v{VQ2}, v{MB}')
stamp()
lp, lpd = k.label('kvpoll'), k.label('kvpd')
k.e(f's_cmp_lg_u32 s{SW}, {E("POLLW", 0)}')
k.e(f's_cbranch_scc1 {lpd}')
k.e('v_mov_b32 v2, 0')
k.e('s_mov_b64 exec, 1')
k.e(f'{lp}:')
k.e(f'global_load_dword v3, v2, s[{P_DBG}:{P_DBG+1}] offset:192 sc1')
k.e(f's_sub_u32 s{SSPIN}, s{SSPIN}, 1')
k.e(f's_cbranch_scc1 {LEND}')
k.e('s_waitcnt vmcnt(0)')
k.e(f'v_readfirstlane_b32 s{T0}, v3')
k.e('s_nop 3')
k.e(f's_cmp_eq_u32 s{T0}, 1')
k.e(f's_cbranch_scc1 {lpd}')
k.e(f's_sleep {E("KVSLEEP", 1)}')
k.e(f's_branch {lp}')
k.e(f'{lpd}:')
k.e('s_mov_b64 exec, -1')
k.e('s_barrier')
stamp()
def kv_issue(st):
    for kv in range(2):
        off = st*8192 + kv*65536
        dma(VL16, R_G, SW10, off, SW10, off, 'sc1')
kv_issue(0)
k.e(f's_mov_b32 s{T0}, {WS_MX:#x}')
k.e(f'buffer_load_dwordx4 v[12:15], v{VL16}, {srd(R_G)}, s{T0} offen sc1')
kv_issue(1); kv_issue(2)
k.e('s_waitcnt vmcnt(4)')
k.e('s_barrier')
stamp()
k.e(f'ds_read_b128 {v(KB[0],4)}, v{VK}')
k.e(f'ds_read_b128 {v(KB[1],4)}, v{VK} offset:2048')
k.e(f's_mov_b64 exec, s[{SMASK}:{SMASK+1}]')
k.e(f'ds_read_b128 {v(VB[0],4)}, v{VV}')
k.e(f'ds_read_b128 {v(VB[0]+4,4)}, v{VV} offset:512')
k.e('s_mov_b64 exec, -1')
k.e('v_max_u32 v12, v12, v13')
k.e('v_max_u32 v13, v14, v15')
k.e('s_nop 1')
k.e('v_permlane32_swap_b32 v12, v13')
k.e('s_nop 1')
k.e('v_max_u32 v12, v12, v13')
for sh in (8, 4, 2, 1):
    k.e('s_nop 1')
    k.e(f'v_max_u32_dpp v12, v12, v12 row_ror:{sh} row_mask:0xf bank_mask:0xf')
k.e('s_waitcnt lgkmcnt(3)')
mf(SA, KB[0], QA)
k.e(f'v_readlane_b32 s{T0}, v12, 0')
k.e(f'v_readlane_b32 s{T2}, v12, 16')
k.e(f'v_readlane_b32 s{T1}, v12, 32')
k.e(f'v_readlane_b32 s{T3}, v12, 48')
k.e(f'v_mov_b32 v13, {f2u(TSAFE*TSAFE):#x}')
k.e('s_nop 2')
k.e(f's_max_u32 s{T0}, s{T0}, s{T2}')
k.e(f's_max_u32 s{T1}, s{T1}, s{T3}')
k.e(f'v_mul_f32 v{VQ2}, s{T0}, v{VQ2}')
k.e(f'v_cmp_nle_f32 vcc, v{VQ2}, v13')
lfb, lepi = k.label('fallback'), k.label('attepi')
k.e(f's_cmp_gt_u32 s{T1}, {f2u(2.0**120):#x}')
k.e(f's_cbranch_scc1 {lfb}')
k.e('s_nop 2')
k.e('s_cmp_lg_u64 vcc, 0')
k.e(f's_cbranch_scc1 {lfb}')
if 'fb' in OPT: k.e(f's_branch {lfb}')

def sm(o, a, b): k.e(f'v_smfmac_f32_32x32x32_bf16 {v(o,16)}, {v(a,4)}, {v(b,8)}, v{VIDX}')
W1SC = 'nt' if 'w1nt' in OPT else ''
def w1_issue(t):
    for u in range(2): dma(VW1, R_B, SW1L, (t&1)*2048 + u*1024, SW1G, (2*t+u)*16*2752, W1SC)
def w1_fetch(t):
    for u in range(2):
        for tt in range(2):
            k.e(f'ds_read_b64_tr_b16 {a_(8*t+4*u+2*tt,2)}, v{VST} offset:{(t&1)*2048 + u*1024 + tt*512}')
W0 = E('W0', 10)
IWO = E('IWO', 28)
PF1, PF2 = E('PF1', 19), E('PF2', 13)
PR = [int(x) for x in os.environ.get('PRIO', '22,28,31').split(',')]
L_WO = [2048, 67584]; L_O = [34816, 100352]; L_X = 133120
def cluster_word(spin):
    lcw, lcw2 = k.label('cw'), k.label('cw2')
    k.e(f'{lcw}:')
    k.e('s_waitcnt vmcnt(0)')
    k.e(f'v_readfirstlane_b32 s{T0}, v15')
    k.e('s_nop 3')
    k.e(f's_lshr_b32 s{T1}, s{T0}, 16')
    k.e(f's_cmp_eq_u32 s{T1}, 0xff')
    k.e(f's_cbranch_scc1 {lcw2}')
    k.e(f's_sub_u32 s{SSPIN}, s{SSPIN}, 1')
    k.e(f's_cbranch_scc1 {LEND}')
    k.e('s_sleep 4')
    k.e(f'global_load_dword v15, v14, s[{P_DBG}:{P_DBG+1}] offset:4 sc1')
    k.e(f's_branch {lcw}')
    k.e(f'{lcw2}:')
    k.e(f's_and_b32 s{T0}, s{T0}, 0xffff')
    k.e(f's_bcnt1_i32_b32 s{T0}, s{T0}')
    k.e(f's_cmp_eq_u32 s{T0}, 1')
    k.e(f's_cselect_b32 s{SFAST}, {0 if "slow" in OPT else 1}, 0')
def attention(fb):
    def ex(r, M):
        if fb: k.e(f'v_sub_f32 v{r}, v{r}, v{M}')
        k.e(f'v_exp_f32 v{r}, v{r}')
    def phase(X, Y, OX, OY, QY, MX, Vprev1, Vcur0, Kf, mid=None, first=False, last=False, cs=None):
        ex(X, MX); ex(X+1, MX)
        if not first: sm(OY, Vprev1, Y+8)
        for r in range(2, 5): ex(X+r, MX)
        if not last: mf(Y, Kf, QY)
        for r in range(5, 10): ex(X+r, MX)
        sm(OX, Vcur0, X)
        if mid: mid()
        for r in range(10, 16):
            ex(X+r, MX)
            if cs is not None and r == 13: m4(CSA, cs, 'a', cs == 0)
            if cs is not None and r == 15: m4(CSA, cs+2, 'a', False)
    k.e('s_setprio 3')
    vm = []
    def pf(slot):
        k.e(f's_lshr_b32 s{T0}, s2, 3')
        k.e(f's_lshl_b32 s{T1}, s{SW}, 5')
        if slot == 0: k.e(f's_xor_b32 s{T1}, s{T1}, 0xe0')
        k.e(f's_add_u32 s{T0}, s{T0}, s{T1}')
        k.e(f's_lshl_b32 s{T0}, s{T0}, 13')
        k.e(f'buffer_load_dword v2, v{VPF}, {srd(R_C if slot == 0 else R_D)}, s{T0} offen')
        vm.append('pf')
    def w1i(c):
        w1_issue(c); vm.extend([c, c])
    for i in range(32):
        p = i & 1
        if i == 2:
            k.e('s_waitcnt vmcnt(10)')
            k.e('s_barrier')
        if i == 6:
            k.e('s_waitcnt vmcnt(2) lgkmcnt(0)')
            k.e('s_barrier')
        for lv in range(3):
            if i == PR[lv]: k.e(f's_setprio {2-lv}')
        def midA():
            if i+2 < 32: k.e(f'ds_read_b128 {v(KB[p],4)}, v{VK} offset:{2048*(i+2)}')
            if i+1 < 32:
                k.e(f's_mov_b64 exec, s[{SMASK}:{SMASK+1}]')
                k.e(f'ds_read_b128 {v(VB[1-p],4)}, v{VV} offset:{2048*(i+1)}')
                k.e(f'ds_read_b128 {v(VB[1-p]+4,4)}, v{VV} offset:{2048*(i+1)+512}')
                k.e('s_mov_b64 exec, -1')
            if i == 0: kv_issue(3)
            if i == 1: kv_issue(6)
            if i == 2:
                k.e(f's_lshr_b32 s{T0}, s2, 3')
                k.e(f's_lshl_b32 s{T1}, s{SW}, 5')
                k.e(f's_add_u32 s{T0}, s{T0}, s{T1}')
                k.e(f's_lshl_b32 s{T0}, s{T0}, 13')
                k.e(f'buffer_load_dword v2, v{VPF}, {srd(R_B)}, s{T0} offen')
                k.e(f's_lshl_b32 s{T0}, s{SJ}, 3')
                k.e(f's_add_u32 s{T0}, s{T0}, s{SW}')
                k.e(f's_mul_i32 s{T0}, s{T0}, 2560')
                k.e('s_mov_b64 exec, 0xfffff')
                k.e(f'buffer_load_dword v3, v{VPF}, {srd(R_CL)}, s{T0} offen sc1')
                k.e('s_mov_b64 exec, -1')
            if 0 <= i - W0 < 2: w1i(i - W0)
            if i == E('PTF', 28):
                k.e(f's_lshl_b32 s{T0}, s{SJ}, 14')
                k.e(f's_add_u32 s{T0}, s{T0}, s{SWL}')
                k.e(f's_add_u32 s{T0}, s{T0}, {C_F:#x}')
                k.e('s_mov_b64 exec, 0xffff')
                k.e(f'buffer_load_dword v3, v{VPF}, {srd(R_CL)}, s{T0} offen sc1')
                k.e('s_mov_b64 exec, -1')
                vm.append('pt')
            if i == PF1: pf(0)
            if i == PF2: pf(1)
            if i in (3, 18):
                k.e(f's_lshl_b32 s{T0}, s{SW}, 2')
                k.e(f'v_mov_b32 v12, s{T0}')
                k.e(f'v_mov_b32 v13, {0 if i == 3 else 1}')
                k.e('ds_write_b32 v12, v13')
            if i == IWO:
                k.e(f'v_and_b32 v12, 7, v{VL}')
                k.e('v_lshlrev_b32 v12, 2, v12')
                k.e('ds_read_b32 v13, v12')
            if i == 31: cluster_word(True)
        def midB():
            if i == 0: kv_issue(4); kv_issue(5)
            if i == 1: kv_issue(7)
            if i == 6:
                k.e(f'buffer_load_dwordx4 {v(XRES,4)}, v{VROW}, {srd(R_A)}, s{SROW} offen')
                la = k.label('noat')
                k.e(f's_cmp_lg_u32 s{SW}, 7')
                k.e(f's_cbranch_scc1 {la}')
                k.e(f's_getreg_b32 s{T0}, hwreg(HW_REG_XCC_ID, 0, 4)')
                k.e(f's_lshl_b32 s{T0}, 1, s{T0}')
                k.e(f's_add_u32 s{T1}, s{SJ}, 16')
                k.e(f's_lshl_b32 s{T1}, 1, s{T1}')
                k.e(f's_or_b32 s{T0}, s{T0}, s{T1}')
                k.e(f's_lshl_b32 s{T1}, s{SCL}, 2')
                k.e(f'v_mov_b32 v14, s{T1}')
                k.e(f'v_mov_b32 v15, s{T0}')
                k.e('s_mov_b64 exec, 1')
                k.e(f'global_atomic_or v14, v15, s[{P_DBG}:{P_DBG+1}] offset:4 sc1')
                k.e('s_mov_b64 exec, -1')
                k.e(f'{la}:')
            c = i - W0 - 2
            if 0 <= c < 16:
                last = len(vm) - 1 - vm[::-1].index(c)
                k.e(f's_waitcnt vmcnt({len(vm) - 1 - last})')
                w1_fetch(c)
            if i == IWO:
                lsp, lok = k.label('sp'), k.label('ok')
                k.e(f'{lsp}:')
                k.e('s_waitcnt lgkmcnt(0)')
                k.e('v_cmp_ne_u32 vcc, 1, v13')
                k.e('s_nop 1')
                k.e('s_cmp_eq_u64 vcc, 0')
                k.e(f's_cbranch_scc1 {lok}')
                k.e('s_sleep 2')
                k.e('ds_read_b32 v13, v12')
                k.e(f's_branch {lsp}')
                k.e(f'{lok}:')
                for kc in range(4): wchunk(R_D, L_WO[kc >> 1] + (kc & 1)*16384, kc)
                k.e(f's_lshl_b32 s{T1}, s{SCL}, 2')
                k.e(f'v_mov_b32 v14, s{T1}')
                k.e(f'global_load_dword v15, v14, s[{P_DBG}:{P_DBG+1}] offset:4 sc1')
        k.e('s_waitcnt lgkmcnt(0)')
        if 2 <= i - 1 - W0 < 16: w1i(i - 1 - W0)
        cc = i - W0 - 3
        csA, csB = (8*cc, 8*cc+4) if 0 <= cc < 16 else (None, None)
        phase(SA, SB, OA, OB, QB, MA, VB[1-p]+4, VB[p], KB[p], midA, first=(i == 0), cs=csA)
        phase(SB, SA, OB, OA, QA, MB, VB[p]+4, VB[p], KB[1-p], midB, last=(i == 31), cs=csB)
    k.e(f'v_add_u32 v12, s{SW1L}, v{VL16}')
    k.e('v_xor_b32 v13, 0x2000, v12')
    sm(OB, VB[1]+4, SB+8)
attention(False)
k.e(f'{lepi}:')
stamp()
l1, l2 = k.label('kh1'), k.label('khj')
k.e(f's_cmp_eq_u32 s{SKH}, 1')
k.e(f's_cbranch_scc1 {l1}')
k.e('s_nop 7')
k.e('s_nop 2')
k.e(f'ds_write_b128 v12, {v(OB+8,4)}')
k.e(f'ds_write_b128 v12, {v(OB+12,4)} offset:1024')
k.e(f'ds_write_b32 v12, v{OB} offset:2048')
k.e(f's_branch {l2}')
k.e(f'{l1}:')
k.e(f'ds_write_b128 v12, {v(OA+8,4)}')
k.e(f'ds_write_b128 v12, {v(OA+12,4)} offset:1024')
k.e(f'ds_write_b32 v12, v{OA} offset:2048')
k.e('s_nop 6')
k.e('s_waitcnt lgkmcnt(0)')
k.e(f'v_mov_b32 v{OA}, v{OB}')
for r in range(8, 16): k.e(f'v_mov_b32 v{OA+r}, v{OB+r}')
k.e(f'{l2}:')
k.e('s_waitcnt lgkmcnt(0)')
k.e('s_barrier')
k.e(f'ds_read_b32 v{SA}, v13 offset:2048')
k.e(f'ds_read_b128 {v(SA+8,4)}, v13')
k.e(f'ds_read_b128 {v(SA+12,4)}, v13 offset:1024')
SKQ = 79
k.e(f's_lshl_b32 s{SKQ}, s{SM}, 1')
k.e(f's_add_u32 s{SKQ}, s{SKQ}, s{SKH}')
k.e(f's_lshl_b32 s{T0}, s{SKQ}, 11')
k.e(f's_add_u32 s{T0}, s{T0}, {L_WO[0]}')
addrA_128(120, 2, T0, msw=False)
k.e('v_xor_b32 v121, 64, v120')
k.e('v_add_u32 v124, 0x10000, v120')
k.e('v_add_u32 v125, 0x10000, v121')
k.e('s_waitcnt lgkmcnt(2)')
k.e(f'v_add_f32 v{OA}, v{OA}, v{SA}')
k.e(f'v_rcp_f32 v{OA}, v{OA}')
k.e('s_waitcnt lgkmcnt(0)')
for r in range(8, 16, 2): k.e(f'v_pk_add_f32 {v(OA+r,2)}, {v(OA+r,2)}, {v(SA+r,2)}')
for r in range(8, 16, 2): k.e(f'v_pk_mul_f32 {v(OA+r,2)}, {v(OA,2)}, {v(OA+r,2)} op_sel:[0,0] op_sel_hi:[0,1]')
for i in range(4): k.e(f'v_cvt_pk_bf16_f32 v{SA+i}, v{OA+8+2*i}, v{OA+9+2*i}')
pub_store([f'buffer_store_dwordx4 {v(SA,4)}, v{VL16}, {srd(R_CL)}, s{SFRAG} offen'])
def slab_addr(c, e, m):
    return ((124 if c >= 2 else 120) + m, (c & 1)*16384 + e*8192)
def slab_frag(i, t, dst):
    c, e, m = i >> 2, (i >> 1) & 1, i & 1
    r, off = slab_addr(c, e, m)
    for tt in range(2): k.e(f'ds_read_b64_tr_b16 {R(t,dst+2*tt,2)}, v{r} offset:{off + tt*1024}')
AO, BO = 48, 80
for i in range(7): slab_frag(i, 'v', AO+4*i)
set_flag(0)
stamp()
k.e('s_waitcnt lgkmcnt(8)')
slab_frag(7, 'v', AO+28)
k.e(f's_lshl_b32 s{T4}, s{SN}, 15')
k.e(f's_lshl_b32 s{T1}, s{SKQ}, 10')
k.e(f's_add_u32 s{T4}, s{T4}, s{T1}')
k.e(f'v_permlane32_swap_b32 v{XRES}, v{XRES+2}')
k.e(f'v_permlane32_swap_b32 v{XRES+1}, v{XRES+3}')
AX, B2R = 112, 116
k.srd(R_B, P_B1, 1376*2)
k.srd(R_D, P_B2, 1024)
L_RED = L_O[1]
k.e(f's_mul_i32 s{T0}, s{SN}, {4*3*2048}')
k.e(f's_add_u32 s{T0}, s{T0}, {L_RED}')
k.e(f'v_add_u32 v14, s{T0}, v{VL16}')
k.e(f's_mul_i32 s{T1}, s{SKQ}, {3*2048}')
k.e(f'v_add_u32 v15, s{T1}, v14')
poll_flags(0)
stamp()
for s_ in range(8):
    k.e(f's_add_u32 s{T7}, s{T4}, {C_O + s_*4096}')
    k.e(f'buffer_load_dwordx4 {v(BO+4*s_,4)}, v{VL16}, {srd(R_CL)}, s{T7} offen {LSC}')
k.e(f'v_and_b32 v2, 31, v{VL}')
k.e('v_lshlrev_b32 v2, 1, v2')
k.e(f'buffer_load_ushort v{AX+2}, v2, {srd(R_B)}, s{SW1G} offen')
k.e(f'v_lshlrev_b32 v3, 3, v{VH}')
k.e(f's_and_b32 s{T0}, s{SROW}, 0x3ff')
k.e(f'buffer_load_dwordx2 {v(B2R,2)}, v3, {srd(R_D)}, s{T0} offen')
k.e(f'buffer_load_dwordx2 {v(B2R+2,2)}, v3, {srd(R_D)}, s{T0} offen offset:16')
for s_ in range(8):
    lg = 'lgkmcnt(0)' if s_ == 0 else (f'lgkmcnt({4*(7-s_)})' if s_ >= 4 else '')
    k.e(f's_waitcnt vmcnt({7-s_+3}) {lg}')
    for m in range(2): mf(16+16*m, AO+4*((2*s_+m) % 8), BO+4*s_, None if s_ == 0 else 16+16*m)
    if s_ < 4:
        if s_ == 3: k.e('s_waitcnt lgkmcnt(8)')
        for m in range(2): slab_frag(2*s_+8+m, 'v', AO+4*(2*s_+m))
stamp()
def reduce4(own):
    labs = [k.label('rq') for _ in range(4)]; lj = k.label('rj')
    for q in range(1, 4):
        k.e(f's_cmp_eq_u32 s{SKQ}, {q}')
        k.e(f's_cbranch_scc1 {labs[q]}')
    for q in range(4):
        k.e(f'{labs[q]}:')
        for d in range(4):
            if d == q: continue
            idx = q if q < d else q - 1
            for hh in range(2): k.e(f'ds_write_b128 v14, {v(16+8*d+4*hh,4)} offset:{(d*3+idx)*2048 + hh*1024}')
        for r in range(0, 8, 2): k.e(f'v_pk_add_f32 {v(own+r,2)}, {v(own+r,2)}, {v(16+8*q+r,2)}')
        if q < 3: k.e(f's_branch {lj}')
    k.e(f'{lj}:')
    k.e('s_waitcnt lgkmcnt(0)')
    k.e('s_barrier')
    for q in range(6): k.e(f'ds_read_b128 {v(48+4*q,4)}, v15 offset:{q*1024}')
def reduce4_fin(own):
    for p in range(3):
        k.e(f's_waitcnt lgkmcnt({4-2*p})')
        for r in range(0, 8, 2): k.e(f'v_pk_add_f32 {v(own+r,2)}, {v(own+r,2)}, {v(48+8*p+r,2)}')
for r in range(4):
    k.e(f'v_lshlrev_b32 v{96+2*r}, 16, v{XRES+r}')
    k.e(f'v_and_b32 v{97+2*r}, 0xffff0000, v{XRES+r}')
VSTAT = 80
k.e(f'v_and_b32 v12, 31, v{VL}')
k.e(f'v_lshlrev_b32 v{VSTAT}, 4, v12')
k.e(f'v_lshl_add_u32 v2, v{VH}, 10, v{VSTAT}')
k.e('v_mov_b32 v3, 0')
L_CNT = 149504
k.e(f'v_mov_b32 v81, {L_CNT}')
k.e('ds_write_b32 v2, v3 offset:12')
k.e('ds_write_b32 v81, v3')
k.e('ds_write_b32 v81, v3 offset:4')
k.e('ds_write_b32 v81, v3 offset:8')
k.e('ds_write_b32 v81, v3 offset:12')
k.e('ds_write_b32 v81, v3 offset:16')
reduce4(96)
k.e('v_mov_b32 v24, 0')
k.e('v_mov_b32 v25, 0')
k.e(f's_add_u32 s{T4}, s{SFRAG}, {C_H:#x}')
k.e(f's_lshr_b32 s{T5}, s{SFRAG}, 2')
k.e(f's_add_u32 s{T5}, s{T5}, {C_S2:#x}')
k.e(f'v_lshlrev_b32 v12, 2, v{VL}')
reduce4_fin(96)
for r in range(4): k.e(f'v_cvt_pk_bf16_f32 v{XRES+r}, v{96+2*r}, v{97+2*r}')
pub_store([f'buffer_store_dwordx4 {v(XRES,4)}, v{VL16}, {srd(R_CL)}, s{T4} offen'])
for r in range(4):
    k.e(f'v_dot2c_f32_bf16 v24, s{SONE}, v{XRES+r}')
    k.e(f'v_dot2c_f32_bf16 v25, v{XRES+r}, v{XRES+r}')
k.e('s_nop 2')
k.e('v_permlane32_swap_b32 v24, v25')
k.e('s_nop 0')
k.e('v_add_f32 v24, v24, v25')
pub_store([f'buffer_store_dword v24, v12, {srd(R_CL)}, s{T5} offen'])
k.e(f'v_mov_b32 v{CSA+1}, v{CSA}')
k.e('s_nop 1')
k.e(f'v_permlane32_swap_b32 v{CSA}, v{CSA+1}')
k.e('s_nop 0')
k.e(f'v_add_f32 v{CSA}, v{CSA}, v{CSA+1}')
set_flag(1)
stamp()
k.e(f'v_cvt_pk_bf16_f32 v12, v{CSA}, v{CSA}')
k.e('v_and_b32 v13, 0xffff0000, v12')
k.e(f'v_sub_f32 v13, v{CSA}, v13')
k.e(f'v_cvt_pk_bf16_f32 v{AX}, v{CSA}, v13')
k.e('v_and_b32 v12, 0xffff, v12')
k.e(f'v_lshl_or_b32 v{AX+1}, v{AX+2}, 16, v12')
k.e(f'v_mov_b32 v{AX+3}, 0')
k.e('s_mov_b32 exec_lo, 0')
for r in range(3): k.e(f'v_mov_b32 v{AX+r}, 0')
k.e('s_mov_b32 exec_lo, -1')
k.e(f'v_add_u32 v82, {L_O[0]}, v{VL16}')
k.e(f'v_add_u32 v83, {L_O[1]}, v{VL16}')
poll_flags(1)
stamp()
def h_piece(pc): dma(VL16, R_CL, SW10, L_O[pc >> 2] + (pc & 3)*8192, SW10, C_H + pc*8192, LSC)
for pc in range(2): h_piece(pc)
for u in range(2): dma(VL16, R_CL, SW10, L_X + u*8192, SW10, C_S2 + u*8192, LSC)
for pc in range(2, 4): h_piece(pc)
U0, U1, FB, TMP = 16, 32, 48, 64
BX = [84, 88]; KC = [92, 96]
def gelu_ops(u, kc, packed=False):
    ops = []
    def grp(rs):
        o = []
        if packed:
            for r in rs[::2]: o.append(f'v_pk_mul_f32 {v(TMP+r,2)}, {v(u+r,2)}, {v(u+r,2)}')
            for r in rs[::2]: o.append(f'v_pk_fma_f32 {v(TMP+r,2)}, {v(TMP+r,2)}, {v(kc,2)}, {v(kc,2)} op_sel:[0,1,0] op_sel_hi:[1,1,0]')
            for r in rs[::2]: o.append(f'v_pk_mul_f32 {v(TMP+r,2)}, {v(TMP+r,2)}, {v(u+r,2)}')
            for r in rs: o.append(f'v_exp_f32 v{TMP+r}, v{TMP+r}')
            for r in rs[::2]: o.append(f'v_pk_fma_f32 {v(TMP+r,2)}, {v(TMP+r,2)}, {v(kc+2,2)}, {v(kc+2,2)}')
            for r in rs: o.append(f'v_rcp_f32 v{TMP+r}, v{TMP+r}')
            for r in rs[::2]: o.append(f'v_pk_mul_f32 {v(TMP+r,2)}, {v(TMP+r,2)}, {v(u+r,2)}')
            return o
        for r in rs: o.append(f'v_mul_f32 v{TMP+r}, v{u+r}, v{u+r}')
        for r in rs: o.append(f'v_fma_f32 v{TMP+r}, v{TMP+r}, v{kc+1}, v{kc}')
        for r in rs: o.append(f'v_mul_f32 v{TMP+r}, v{TMP+r}, v{u+r}')
        for r in rs: o.append(f'v_exp_f32 v{TMP+r}, v{TMP+r}')
        for r in rs: o.append(f'v_fma_f32 v{TMP+r}, v{TMP+r}, v{kc+2}, v{kc+2}')
        for r in rs: o.append(f'v_rcp_f32 v{TMP+r}, v{TMP+r}')
        for r in rs: o.append(f'v_mul_f32 v{TMP+r}, v{u+r}, v{TMP+r}')
        return o
    g = 8 if packed else 4
    for q in range(0, 16, g): ops += grp(list(range(q, q+g)))
    for r in range(8): ops.append(f'v_cvt_pk_bf16_f32 v{u+r}, v{TMP+2*r}, v{TMP+2*r+1}')
    return ops
def T0f(j): return 5*j + min(j, 3)
GROUP_ROW = [32*(T0f(j)+4+m) for j in range(3) for m in range(2)] + [32*(T0f(j)+4) for j in range(3, 8)]
def vrow(g):
    return 32*(T0f(g >> 2) + (g & 3)) if g < 32 else GROUP_ROW[g-32]
def f_store_full(u, n):
    k.e(f's_lshl_b32 s{T5}, s{SJ}, 13')
    k.e(f's_add_u32 s{T5}, s{T5}, s{SWL}')
    k.e(f's_add_u32 s{T5}, s{T5}, {C_F + n*65536:#x}')
    pub_store([f'buffer_store_dwordx4 {v(u,4)}, v{VL16}, {srd(R_CL)}, s{T5} offen',
               f'buffer_store_dwordx4 {v(u+4,4)}, v{VL16}, {srd(R_CL)}, s{T5} offen offset:1024'])
def mm_stream(seq, fill=None, hooks=None, extra=None, post=None):
    n = len(seq)
    log = []
    def rd(q):
        k.e(f'ds_read_b128 {v(FB+4*(q%4),4)}, v{82+seq[q][2]} offset:{seq[q][1]*1024}')
        log.append(q)
    for q in range(min(3, n)): rd(q)
    fi = 0
    for q in range(n):
        if hooks and q in hooks:
            hooks[q]()
            if extra and q in extra: log.extend([-1]*extra[q])
        if q+3 < n: rd(q+3)
        k.e(f's_waitcnt lgkmcnt({len(log) - 1 - log.index(q)})')
        acc, ks, _ = seq[q]
        mf(acc, 4*ks, FB+4*(q%4), None if ks == 0 else acc, at='a')
        if post and q in post: post[q]()
        if fill:
            f0, f1, ops = fill
            if f0 <= q < f1:
                tgt = (q - f0 + 1) * len(ops) // (f1 - f0)
                while fi < tgt:
                    k.e(ops[fi]); fi += 1
def w2_frag(i): slab_frag(i, 'a', 4*i)
def cnt_add(idx):
    k.e('s_mov_b64 exec, 1')
    k.e(f'ds_add_u32 v81, v100 offset:{4*idx}')
    k.e('s_mov_b64 exec, -1')
def cnt_wait(idx, n, va=81, vt=101):
    l = k.label('cw')
    k.e(f'{l}:')
    k.e(f'ds_read_b32 v{vt}, v{va} offset:{4*idx}')
    k.e('s_waitcnt lgkmcnt(0)')
    k.e(f'v_readfirstlane_b32 s{T0}, v{vt}')
    k.e('s_nop 3')
    k.e(f's_cmp_lt_u32 s{T0}, {n}')
    k.e(f's_cbranch_scc1 {l}')
def rd_stats(ns, slots):
    l = k.label('sw')
    k.e(f'{l}:')
    for n_, sl in zip(ns, slots): k.e(f'ds_read_b128 {v(BX[sl],4)}, v{VSTAT} offset:{n_*1024}')
    for n_, sl in zip(ns, slots): k.e(f'ds_read_b128 {v(KC[sl],4)}, v{VSTAT} offset:{n_*1024+512}')
    k.e('s_waitcnt lgkmcnt(0)')
    if len(slots) == 2: k.e(f'v_and_b32 v101, v{BX[0]+3}, v{BX[1]+3}')
    k.e(f'v_cmp_eq_u32 vcc, 0, v{101 if len(slots) == 2 else BX[slots[0]]+3}')
    k.e('s_nop 1')
    k.e('s_cmp_lg_u64 vcc, 0')
    k.e(f's_cbranch_scc1 {l}')
L_C10 = 151552
CH_LDS = {0: L_WO[0], 1: L_WO[0]+16384, 2: L_WO[1], 3: L_WO[1]+16384, 4: L_O[0], 5: L_O[0]+16384, 6: L_WO[0], 7: L_WO[0]+16384, 8: L_X, 9: L_WO[1], 10: L_C10}
def w2_group(g):
    dma(VOW, R_C, T3, CH_LDS[g >> 2] + (g & 3)*4096, T2, vrow(g)*1024)
def w2_regs():
    k.e(f's_and_b32 s{T3}, s{SW}, 3')
    k.e(f's_lshl_b32 s{T2}, s{T3}, 13')
    k.e(f's_lshl_b32 s{T1}, s{SJ}, 7')
    k.e(f's_add_u32 s{T2}, s{T2}, s{T1}')
    k.e(f's_lshl_b32 s{T3}, s{T3}, 10')
k.e('v_mov_b32 v100, 1')
w2_regs()
lhalf, lf2 = k.label('half'), k.label('ffn2')
k.e(f's_cmp_ge_u32 s{SW}, 4')
k.e(f's_cbranch_scc1 {lhalf}')
stamp(40)
k.e('s_waitcnt vmcnt(4)')
k.e('s_barrier')
stamp(41)
def b15():
    k.e('s_waitcnt vmcnt(0)')
    k.e('s_barrier')
mm_stream([(U0, ks, 0) for ks in range(32)], hooks={E('B15', 8): b15})
cnt_add(4)
stamp(44)
rd_stats([0, 1], [0, 1])
stamp(45)
mf(U0, AX, BX[0], U0)
cnt_wait(0, 4)
k.e('s_nop 4')
for o in gelu_ops(U0, KC[0]): k.e(o)
f_store_full(U0, 0)
cnt_wait(1, 4)
stamp(46)
def c_done():
    k.e('s_waitcnt lgkmcnt(0)'); cnt_add(2)
hooks = {1+i: (lambda i=i: w2_frag(i)) for i in range(16)}
extra = {1+i: 2 for i in range(16)}
hooks[18] = c_done; extra[18] = 1
mm_stream([(U1, ks, 1) for ks in range(32)], hooks=hooks, extra=extra, post={1: lambda: mf(U1, AX, BX[1], U1)})
stamp()
k.e('s_nop 7')
k.e('s_nop 3')
for o in gelu_ops(U1, KC[1], True): k.e(o)
f_store_full(U1, 1)
stamp(49)
set_flag(2)
k.e(f's_branch {lf2}')
k.e(f'{lhalf}:')
stamp(40)
k.e('s_waitcnt vmcnt(4)')
k.e('s_barrier')
stamp(41)
for pc in range(8): dma(VL16, R_CL, T3, L_O[1] + pc*4096, T3, C_H + 32768 + pc*4096, LSC)
stamp(42)
k.e('s_waitcnt vmcnt(8)')
k.e('s_barrier')
stamp(43)
lns = k.label('nostat')
k.e(f's_cmp_lt_u32 s{SW}, 6')
k.e(f's_cbranch_scc1 {lns}')
k.e('s_setprio 2')
k.e(f's_lshl_b32 s{T0}, s{SM}, 13')
k.e(f's_add_u32 s{T0}, s{T0}, {L_X}')
k.e(f'v_lshl_add_u32 v2, v{VL}, 2, s{T0}')
for q in range(16):
    if q == 12: k.e('s_waitcnt lgkmcnt(8)')
    k.e(f'ds_read2st64_b32 {v(U0+2*q,2)}, v2 offset0:{2*q} offset1:{2*q+1}')
k.e(f's_lshl_b32 s{T0}, s{SM}, 10')
k.e(f'v_add_u32 v3, s{T0}, v{VSTAT}')
k.e('v_mov_b32 v101, 0')
k.e('v_mov_b32 v87, 1')
k.e('s_waitcnt lgkmcnt(0)')
for q in range(16): k.e(f'v_add_f32 v{U0+q}, v{U0+q}, v{U0+16+q}')
for q in range(8): k.e(f'v_add_f32 v{U0+q}, v{U0+q}, v{U0+8+q}')
for q in range(4): k.e(f'v_add_f32 v{U0+q}, v{U0+q}, v{U0+4+q}')
for q in range(2): k.e(f'v_add_f32 v{U0+q}, v{U0+q}, v{U0+2+q}')
k.e(f'v_add_f32 v12, v{U0}, v{U0+1}')
k.e('v_mov_b32 v13, v12')
k.e('s_nop 1')
k.e('v_permlane32_swap_b32 v12, v13')
k.e('s_nop 1')
k.e(f'v_mul_f32 v12, {f2u(-1/512):#x}, v12')
k.e(f'v_mul_f32 v13, {f2u(1/512):#x}, v13')
k.e('v_fma_f32 v13, -v12, v12, v13')
k.e('v_max_f32 v13, 0, v13')
k.e(f'v_add_f32 v13, {f2u(EPS):#x}, v13')
k.e('v_rsq_f32 v16, v13')
k.e('v_cvt_pk_bf16_f32 v84, v12, v12')
k.e('v_mul_f32 v94, v13, v16')
k.e('v_and_b32 v17, 0xffff0000, v84')
k.e('v_sub_f32 v17, v12, v17')
k.e('v_cvt_pk_bf16_f32 v85, v17, v94')
k.e('v_mov_b32 v95, v94')
k.e('v_and_b32 v17, 0xffff0000, v85')
k.e('v_sub_f32 v17, v94, v17')
k.e('v_cvt_pk_bf16_f32 v86, v17, v101')
k.e(f'v_mul_f32 v92, {f2u(GC0):#x}, v16')
k.e('v_mul_f32 v93, v16, v16')
k.e('v_mul_f32 v93, v93, v92')
k.e(f'v_mul_f32 v93, {f2u(0.044715):#x}, v93')
k.e('ds_write_b128 v3, v[92:95] offset:512')
k.e('ds_write_b128 v3, v[84:87]')
k.e('s_setprio 0')
k.e(f'{lns}:')
G1 = list(range(16)) + [40, 41, 42]
for g in G1[:4]: w2_group(g)
k.e('s_waitcnt vmcnt(4)')
cnt_add(0)
stamp(44)
for g in G1[4:]: w2_group(g)
stamp(45)
k.e(f's_mul_i32 s{T0}, s{SKH}, {L_O[1]-L_O[0]}')
k.e(f'v_add_u32 v82, s{T0}, v82')
k.e(f's_lshl_b32 s{T0}, s{SKH}, 10')
k.e(f'v_add_u32 v102, s{T0}, v{VSTAT}')
cnt_wait(0, 4)
k.e(f's_setprio {E("HPRIO", 1)}')
stamp(46)
def c_b1():
    k.e('s_waitcnt vmcnt(0)'); cnt_add(1)
def h_stats():
    rd_stats([0, 1], [0, 1])
    k.e(f'ds_read_b128 {v(BX[0],4)}, v102')
    k.e(f'ds_read_b128 {v(KC[0],4)}, v102 offset:512')
hooks = {6: c_b1, 12: h_stats, 15: lambda: cnt_wait(1, 4)}
extra = {6: 1, 12: 2}
for i in range(16):
    hooks[16+i] = (lambda i=i: w2_frag(i)); extra[16+i] = 2
mm_stream([(U0, ks, 0) for ks in range(32)], hooks=hooks, extra=extra, post={20: lambda: mf(U0, AX, BX[0], U0)})
stamp(12)
k.e('s_setprio 0')
k.e('s_waitcnt lgkmcnt(0)')
cnt_add(2)
cnt_add(4)
for g in range(32, 36): w2_group(g)
lno = k.label('idle')
k.e(f's_cmp_ge_u32 s{SJ}, 3')
k.e(f's_cselect_b32 s{T0}, s{SM}, 0')
k.e(f's_cmp_lg_u32 s{T0}, 0')
k.e(f's_cbranch_scc1 {lno}')
k.e(f's_lshl_b32 s{T0}, s{SJ}, 1')
k.e(f's_add_u32 s{T0}, s{T0}, s{SM}')
k.e(f's_add_u32 s{T1}, s{SJ}, 3')
k.e(f's_min_u32 s{T5}, s{T0}, s{T1}')
k.e(f's_mul_i32 s{T0}, s{SKH}, 11')
k.e(f's_add_u32 s{T5}, s{T5}, s{T0}')
k.e(f's_lshl_b32 s{T5}, s{T5}, 11')
for o in gelu_ops(U0, KC[0]): k.e(o)
pub_store([f'buffer_store_dwordx4 {v(U0,4)}, v{VL16}, {srd(R_CL)}, s{T5} offen',
           f'buffer_store_dwordx4 {v(U0+4,4)}, v{VL16}, {srd(R_CL)}, s{T5} offen offset:1024'])
k.e(f'{lno}:')
stamp(49)
cnt_wait(4, 8)
for g in range(16, 24): w2_group(g)
set_flag(2, 8)
stamp(50)
cnt_wait(2, 8)
stamp(52)
for g in list(range(24, 32)) + list(range(36, 40)): w2_group(g)
k.e('s_waitcnt vmcnt(0)')
cnt_add(3)
k.e(f'{lf2}:')
stamp()
k.srd(R_A, P_OUT, 2048*1024)
SFG, SFG2 = 74, 75
k.e(f's_lshl_b32 s{T0}, s{SKQ}, 10')
k.e(f's_lshl_b32 s{SFG}, s{SN}, 16')
k.e(f's_add_u32 s{SFG}, s{SFG}, s{T0}')
k.e(f's_mul_i32 s{SFG2}, s{SN}, {22*1024}')
k.e(f's_add_u32 s{SFG2}, s{SFG2}, s{T0}')
k.e(f'v_add_u32 v12, {2*65536}, v120')
k.e(f'v_add_u32 v13, {2*65536}, v121')
k.e('v_mov_b32 v112, v81')
poll_flags(2)
stamp()
NB = 16; BR = 48
def ldB(s_):
    if s_ < 16: k.e(f's_add_u32 s{T7}, s{SFG}, {C_F + s_*4096}')
    else: k.e(f's_add_u32 s{T7}, s{SFG2}, {C_O + (s_-16)*4096}')
    k.e(f'buffer_load_dwordx4 {v(BR+4*(s_%NB),4)}, v{VL16}, {srd(R_CL)}, s{T7} offen {LSC}')
def rdA(s_):
    c, e = s_ >> 1, s_ & 1
    off = CH_LDS[c] - L_WO[0] + e*8192
    base = [120, 124, 12][off >> 16]
    for m in range(2):
        for tt in range(2): k.e(f'ds_read_b64_tr_b16 {a_(8*(s_%16)+4*m+2*tt,2)}, v{base+m} offset:{(off & 0xffff) + tt*1024}')
N0 = E('N0', 6)
LA = 6
nld = 0
for s_ in range(N0): ldB(s_); nld += 1
llast = k.label('last')
for s_ in range(22):
    if s_ == 8 - LA: cnt_wait(3, 4, 112, 113)
    if s_ == 21:
        k.e(f's_cmp_ge_u32 s{SKQ}, 2')
        k.e(f's_cbranch_scc1 {llast}')
    lg = ''
    if s_ >= 8 - LA + 2:
        last_issued = min(s_ - 1 + LA, 21)
        lg = f' lgkmcnt({min(8, 4*(last_issued - s_)) if s_ >= 8 else 8})'
    k.e(f's_waitcnt vmcnt({nld-1-s_}){lg}')
    for m in range(2):
        mf(16+16*m, 8*(s_%16)+4*m, BR+4*(s_%NB), None if s_ == 0 else 16+16*m, at='a')
        if nld < 22 and nld - s_ < NB:
            ldB(nld); nld += 1
    if 8 <= s_+LA < 22: rdA(s_+LA)
k.e(f'{llast}:')
k.e('s_waitcnt vmcnt(0) lgkmcnt(0)')
stamp()
for r in range(4):
    k.e(f'v_lshlrev_b32 v{96+2*r}, 16, v{XRES+r}')
    k.e(f'v_and_b32 v{97+2*r}, 0xffff0000, v{XRES+r}')
    k.e(f'v_lshlrev_b32 v{104+2*r}, 16, v{B2R+r}')
    k.e(f'v_and_b32 v{105+2*r}, 0xffff0000, v{B2R+r}')
for r in range(8): k.e(f'v_add_f32 v{96+r}, v{96+r}, v{104+r}')
k.e(f'v_subrev_u32 v14, {16384}, v14')
k.e(f'v_subrev_u32 v15, {16384}, v15')
reduce4(96)
reduce4_fin(96)
for r in range(4): k.e(f'v_cvt_pk_bf16_f32 v{24+r}, v{96+2*r}, v{97+2*r}')
k.e('s_nop 1')
k.e('v_permlane32_swap_b32 v24, v26')
k.e('v_permlane32_swap_b32 v25, v27')
k.e(f'buffer_store_dwordx4 v[24:27], v{VROW}, {srd(R_A)}, s{SROW} offen')
stamp()
stamp_flush()
k.e(f'{LEND}:')
k.e('s_endpgm')
k.e(f'{lfb}:')
k.e(f's_mov_b32 s{T0}, {WS_K:#x}')
k.e(f'v_mov_b32 v{MA}, 0xff800000')
k.e(f'v_mov_b32 v{MB}, 0xff800000')
lf = k.label('fbl')
k.e(f'{lf}:')
k.e(f'buffer_load_dwordx4 v[12:15], v{VL16}, {srd(R_G)}, s{T0} offen sc1')
k.e('s_waitcnt vmcnt(0)')
mf(SA, 12, QA)
mf(SB, 12, QB)
k.e('s_nop 15')
for r in range(0, 16, 2): k.e(f'v_max3_f32 v{MA}, v{MA}, v{SA+r}, v{SA+r+1}')
for r in range(0, 16, 2): k.e(f'v_max3_f32 v{MB}, v{MB}, v{SB+r}, v{SB+r+1}')
k.e(f's_add_u32 s{T0}, s{T0}, 1024')
k.e(f's_cmp_lt_u32 s{T0}, {WS_K+65536:#x}')
k.e(f's_cbranch_scc1 {lf}')
mf(SA, KB[0], QA)
k.e(f'v_mov_b32 v2, v{MA}')
k.e(f'v_mov_b32 v3, v{MB}')
k.e('s_nop 1')
k.e(f'v_permlane32_swap_b32 v{MA}, v2')
k.e(f'v_permlane32_swap_b32 v{MB}, v3')
k.e('s_nop 1')
k.e(f'v_max_f32 v{MA}, v{MA}, v2')
k.e(f'v_max_f32 v{MB}, v{MB}, v3')
k.e('s_nop 7')
attention(True)
k.e(f's_branch {lepi}')

hdr = open('header.txt').read()
txt = emit_file(hdr, [], [k])
txt = txt.replace('.amdgcn_target', '; @launch grid=(256,1,1) block=(512,1,1) lds=163840\n.amdgcn_target', 1)
open(sys.argv[1], 'w').write(txt)
```

```python
import sys, math, struct, os
from asmlib import *

NAME = 'sequential_preLN__grouped_kv_mqa__dense_activation_gelu__prompt'
def f2u(x): return struct.unpack('<I', struct.pack('<f', x))[0]
OPT = os.environ.get('OPT', '').split(',')
STAMP = 'stamp' in OPT
def E(name, d): return int(os.environ.get(name, str(d)))

WS_K, WS_V, WS_MX, WS_G = 0x0, 0x10000, 0x20000, 0x21000
WS_CL, CB = 0x40000, 0x48000
C_O, C_H, C_S2, C_FL, C_F = 0x0, 0x10000, 0x20000, 0x24000, 0x28000
WS_ST = 0xE00000

QS = 0.25 * math.log2(math.e)
EPS = 1e-5
ONES_BF = 0x3F803F80
TSAFE = 50.0
GC0 = -2.0 * math.log2(math.e) * math.sqrt(2.0 / math.pi)
GC1 = GC0 * 0.044715
SPIN_LIMIT = 1 << 20
LSC = os.environ.get('LSC', 'sc1')

P_X, P_WQ, P_WK, P_WV, P_WO, P_W1, P_B1, P_W2, P_B2, P_OUT, P_DBG, P_WS = 4, 6, 8, 10, 12, 16, 18, 20, 22, 24, 26, 28
R_G, R_CL, R_A, R_B, R_C, R_D = 32, 36, 40, 44, 80, 84
SW, SCL, SJ, SM, SN, SKH, SFAST, SONE = 50, 51, 52, 53, 54, 55, 56, 57
STILE, SFRAG, SROW, SFLW, SSPIN, SW10 = 58, 59, 60, 61, 62, 63
T0, T1, T2, T3, T4, T5, T6, T7 = 64, 65, 66, 67, 68, 69, 70, 71
SMASK = 72
SW1G, SW1L, SPF, SWG, SWL = 74, 75, 76, 77, 78
VL, VL16, VH, VOW, VROW, XRES = 1, 4, 5, 6, 7, 8

k = K(NAME + '_kernel')
LEND = 'L_end'
stamp_n = [0]
def stamp(fixed=None):
    if not STAMP: return
    if fixed is None:
        idx = stamp_n[0]; stamp_n[0] += 1
    else: idx = fixed
    lab = k.label('st')
    k.e(f's_and_b32 s96, s{SW}, 3')
    k.e(f's_cmp_lg_u32 s96, {E("SWV", 0)}')
    k.e(f's_cbranch_scc1 {lab}')
    k.e('s_memrealtime s[90:91]')
    k.e('s_memtime s[94:95]')
    k.e('s_waitcnt lgkmcnt(0)')
    k.e(f'v_writelane_b32 v126, s90, {idx}')
    k.e(f'v_writelane_b32 v127, s94, {idx}')
    k.e(f'{lab}:')
def stamp_flush():
    if not STAMP: return
    lab = k.label('st')
    k.e(f's_and_b32 s96, s{SW}, 3')
    k.e(f's_cmp_lg_u32 s96, {E("SWV", 0)}')
    k.e(f's_cbranch_scc1 {lab}')
    k.e(f's_lshl_b32 s92, s2, 10')
    k.e(f's_lshl_b32 s96, s{SN}, 9')
    k.e('s_add_u32 s92, s92, s96')
    k.e(f's_add_u32 s92, s92, {WS_ST}')
    k.e(f'v_lshlrev_b32 v2, 3, v{VL}')
    k.e('v_add_u32 v2, s92, v2')
    k.e(f'global_store_dwordx2 v2, v[126:127], s[{P_WS}:{P_WS+1}]')
    if 'dbgout' in OPT:
        k.e('s_cmp_lg_u32 s2, 45')
        k.e(f's_cbranch_scc1 {lab}')
        k.e(f's_cmp_lg_u32 s{SW}, 0')
        k.e(f's_cbranch_scc1 {lab}')
        k.e('v_readlane_b32 s92, v126, 0')
        k.e(f'v_lshlrev_b32 v2, 2, v{VL}')
        k.e('s_nop 3')
        k.e('v_subrev_u32 v3, s92, v126')
        k.e('s_mov_b64 exec, 0x1fffe')
        k.e(f'global_store_dword v2, v3, s[{P_DBG}:{P_DBG+1}] offset:-4')
    k.e(f'{lab}:')

def srd(r): return f's[{r}:{r+3}]'
def dma(voff, r, lds_s, lds_off, g_s, g_off, sc=''):
    k.e(f's_add_u32 m0, s{lds_s}, {lds_off}')
    k.e(f's_add_u32 s{T7}, s{g_s}, {g_off}')
    k.e(f'buffer_load_dwordx4 v{voff}, {srd(r)}, s{T7} offen {sc} lds')
def R(t, a, n): return v(a, n) if t == 'v' else a_(a, n)
def mf(d, a, b, c=None, at='v', bt='v'):
    C = '0' if c is None else v(c, 16)
    k.e(f'v_mfma_f32_32x32x16_bf16 {v(d,16)}, {R(at,a,4)}, {R(bt,b,4)}, {C}')
def pub_store(ins):
    l1, l2 = k.label('slow'), k.label('pj')
    k.e(f's_cmp_eq_u32 s{SFAST}, 0')
    k.e(f's_cbranch_scc1 {l1}')
    for i in ins: k.e(i)
    k.e(f's_branch {l2}')
    k.e(f'{l1}:')
    for i in ins: k.e(i + ' sc1')
    k.e(f'{l2}:')
def set_flag(phase, cnt=0):
    k.e('v_mov_b32 v2, 0')
    k.e('v_mov_b32 v3, 1')
    k.e(f's_waitcnt vmcnt({cnt})')
    k.e('s_mov_b64 exec, 1')
    pub_store([f'buffer_store_dword v3, v2, {srd(R_CL)}, s{SFLW} offen offset:{phase*256}'])
    k.e('s_mov_b64 exec, -1')
def poll_flags(phase):
    lp = k.label('poll')
    k.e(f'v_lshlrev_b32 v2, 2, v{VL}')
    k.e(f's_mov_b32 s{T0}, {C_FL:#x}')
    k.e(f'{lp}:')
    k.e(f'buffer_load_dword v3, v2, {srd(R_CL)}, s{T0} offen offset:{phase*256} sc1')
    k.e(f's_sub_u32 s{SSPIN}, s{SSPIN}, 1')
    k.e(f's_cbranch_scc1 {LEND}')
    k.e('s_waitcnt vmcnt(0)')
    k.e('v_cmp_ne_u32 vcc, 1, v3')
    k.e('s_nop 1')
    k.e('s_cmp_lg_u64 vcc, 0')
    k.e(f's_cbranch_scc1 {lp}')
def mean_rstd(vs, vq):
    k.e(f'v_mul_f32 v{vs}, {f2u(1/512):#x}, v{vs}')
    k.e(f'v_mul_f32 v{vq}, {f2u(1/512):#x}, v{vq}')
    k.e(f'v_fma_f32 v{vq}, -v{vs}, v{vs}, v{vq}')
    k.e(f'v_max_f32 v{vq}, 0, v{vq}')
    k.e(f'v_add_f32 v{vq}, {f2u(EPS):#x}, v{vq}')
    k.e(f'v_rsq_f32 v{vq}, v{vq}')
    k.e('s_nop 0')
def addrA_128(dst, hshift, base_sreg, msw=True):
    k.e(f'v_bfe_u32 v2, v{VL}, 2, 2')
    k.e(f'v_lshl_add_u32 v3, v{VH}, {hshift}, v2')
    k.e('v_lshrrev_b32 v2, 1, v2')
    if msw: k.e(f'v_xor_b32 v2, s{SM}, v2')
    k.e('v_lshlrev_b32 v2, 6, v2')
    k.e('v_lshl_add_u32 v2, v3, 7, v2')
    k.e(f'v_bfe_u32 v3, v{VL}, 4, 1')
    k.e('v_lshl_add_u32 v2, v3, 5, v2')
    k.e(f'v_and_b32 v3, 3, v{VL}')
    k.e('v_lshl_add_u32 v2, v3, 3, v2')
    k.e(f'v_add_u32 v{dst}, s{base_sreg}, v2')
def wchunk(r, ldsoff, c, sc=''):
    for u in range(2):
        dma(VOW, r, SWL, ldsoff + u*1024, SWG, c*131072 + u*8192, sc)

SA, SB, OA, OB = 16, 32, 48, 64
QA, QB = 80, 84
KB = [88, 92]; VB = [96, 104]
VIDX, VK, VV, VW1, VST, MA, MB, VPF = 112, 113, 114, 115, 116, 117, 118, 119
VQ2 = MA
CSA = 122
STG = 131072

k.e('s_load_dwordx16 s[4:19], s[0:1], 0')
k.e('s_load_dwordx8 s[20:27], s[0:1], 64')
k.e('s_load_dwordx2 s[28:29], s[0:1], 96')
k.e('s_cmp_ge_u32 s2, 256')
k.e(f's_cbranch_scc1 {LEND}')
k.e('v_lshrrev_b32 v2, 6, v0')
k.e(f'v_and_b32 v{VL}, 63, v0')
k.e(f'v_readfirstlane_b32 s{SW}, v2')
k.e(f's_and_b32 s{T0}, s2, 7')
k.e(f's_lshr_b32 s{T1}, s2, 3')
k.e(f's_and_b32 s{SJ}, s{T1}, 7')
k.e(f's_lshr_b32 s{T1}, s{T1}, 3')
k.e(f's_lshl_b32 s{T0}, s{T0}, 2')
k.e(f's_add_u32 s{SCL}, s{T0}, s{T1}')
k.e(f's_and_b32 s{SM}, s{SW}, 1')
k.e(f's_lshr_b32 s{SN}, s{SW}, 2')
k.e(f's_bfe_u32 s{SKH}, s{SW}, 0x10001')
k.e(f'v_lshlrev_b32 v{VL16}, 4, v{VL}')
k.e(f'v_lshrrev_b32 v{VH}, 5, v{VL}')
if STAMP:
    k.e('v_mov_b32 v126, -1'); k.e('v_mov_b32 v127, -1')
XB, WB, KVB = 0, 65536, 131072
SKC, SNX = 79, 88
k.e(f's_and_b32 s{SKC}, s{SW}, 3')
k.e(f's_cmp_eq_u32 s{SJ}, 1')
k.e(f's_cselect_b32 s{T0}, 1, 0')
k.e(f's_xor_b32 s{SNX}, s{SN}, s{T0}')
k.e(f'v_lshrrev_b32 v2, 4, v{VL}')
k.e(f'v_and_b32 v3, 15, v{VL}')
k.e('v_xor_b32 v3, v3, v2')
k.e('v_lshlrev_b32 v3, 4, v3')
k.e('v_lshl_add_u32 v16, v2, 10, v3')
for c in range(1, 4): k.e(f'v_xor_b32 v{16+c}, {c*4096 + c*64:#x}, v16')
k.e(f'v_lshrrev_b32 v2, 3, v{VL}')
k.e(f'v_and_b32 v3, 7, v{VL}')
k.e(f'v_lshrrev_b32 v13, 2, v{VL}')
k.e('v_and_b32 v13, 4, v13')
k.e('v_xor_b32 v3, v3, v13')
k.e('v_lshlrev_b32 v3, 4, v3')
k.e(f'v_lshl_add_u32 v{VOW}, v2, 10, v3')
k.e(f's_lshl_b32 s{T4}, s{SCL}, 16')
k.e(f's_lshl_b32 s{T1}, s{SNX}, 15')
k.e(f's_add_u32 s{T4}, s{T4}, s{T1}')
k.e(f's_lshl_b32 s{T1}, s{SKC}, 8')
k.e(f's_add_u32 s{T4}, s{T4}, s{T1}')
k.e(f's_lshl_b32 s{T5}, s{SKC}, 14')
k.e(f's_lshl_b32 s{T1}, s{SNX}, 13')
k.e(f's_add_u32 s{T5}, s{T5}, s{T1}')
k.e(f's_lshl_b32 s{T6}, s{SKC}, 12')
k.e(f's_lshl_b32 s{T3}, s{SJ}, 7')
k.e('s_waitcnt lgkmcnt(0)')
stamp()
k.srd(R_A, P_X, 2048*1024)
for t in range(8): dma(16 + (t & 3), R_A, T5, XB + t*1024, T4, (t >> 2)*16384)
lnp, lp47, lsetup = k.label('nprod'), k.label('p47'), k.label('setup')
k.srd(R_D, P_WQ, 512*1024)
k.e(f's_cmp_ge_u32 s{SJ}, 2')
k.e(f's_cbranch_scc1 {lnp}')
k.e(f's_cmp_ge_u32 s{SW}, 4')
k.e(f's_cbranch_scc1 {lp47}')
k.srd(R_B, P_WK, 16384)
k.srd(R_C, P_WV, 16384)
for u in range(4): dma(VL16, R_B, T6, KVB + u*1024, T6, u*1024)
for u in range(4): dma(VL16, R_C, T6, KVB + 16384 + u*1024, T6, u*1024)
k.e(f's_branch {lsetup}')
k.e(f'{lp47}:')
k.e(f's_lshl_b32 s{T0}, s{SKC}, 16')
k.e(f's_add_u32 s{T0}, s{T0}, s{T3}')
k.e(f's_lshl_b32 s{T1}, s{SKC}, 13')
for u in range(8): dma(VOW, R_D, T1, WB + u*1024, T0, u*8192)
k.e(f's_branch {lsetup}')
k.e(f'{lnp}:')
k.e(f's_lshl_b32 s{T0}, s{SW}, 15')
k.e(f's_add_u32 s{T0}, s{T0}, s{T3}')
k.e(f's_lshl_b32 s{T1}, s{SW}, 12')
for hh in range(2):
    for u in range(4): dma(VOW, R_D, T1, WB + hh*32768 + u*1024, T0, hh*262144 + u*8192)
k.e(f'{lsetup}:')
stamp(23)
k.e(f'v_and_b32 v3, 15, v{VL}')
k.e(f'v_xor_b32 v2, v{VH}, v3')
k.e('v_lshlrev_b32 v2, 4, v2')
k.e(f'v_and_b32 v3, 31, v{VL}')
k.e('v_lshl_add_u32 v94, v3, 8, v2')
k.e(f'v_add_u32 v80, s{T5}, v94')
for i in range(1, 8): k.e(f'v_xor_b32 v{80+i}, {i*32}, v80')
k.e(f'v_lshlrev_b32 v2, 4, v{VH}')
k.e(f'v_lshl_add_u32 v{VROW}, v3, 10, v2')
k.e(f's_mov_b32 s{SONE}, {ONES_BF:#x}')
ACC, CQ, BV, AB = 16, 32, 48, 80
PB, PA, PKV = 8, 12, 14
VS1, VS2 = 92, 93
k.e(f'v_mov_b32 v{VS1}, 0')
k.e(f'v_mov_b32 v{VS2}, 0')
k.e(f'v_mov_b32 v120, s{SONE}')
k.e(f'v_mov_b32 v121, s{SONE}')
ONES2 = 'v[120:121]'
k.e(f's_lshl_b32 s{T0}, s{SKH}, 5')
k.e(f'v_xor_b32 v2, s{T0}, v94')
k.e(f's_lshl_b32 s{T0}, s{SN}, 13')
k.e(f'v_add_u32 v{PB}, s{T0}, v2')
k.e(f'v_xor_b32 v{PB+1}, 64, v{PB}')
k.e(f'v_xor_b32 v{PB+2}, 0x80, v{PB}')
k.e(f'v_xor_b32 v{PB+3}, 0xc0, v{PB}')
k.e(f's_lshl_b32 s{T0}, s{SKH}, 11')
k.e(f's_add_u32 s{T0}, s{T0}, {WB}')
addrA_128(PA, 3, T0)
k.e(f'v_bfe_u32 v2, v{VL}, 2, 2')
k.e(f'v_lshl_add_u32 v2, v{VH}, 3, v2')
k.e('v_lshlrev_b32 v2, 5, v2')
k.e(f'v_bfe_u32 v3, v{VL}, 4, 1')
k.e('v_lshl_add_u32 v2, v3, 14, v2')
k.e(f'v_and_b32 v3, 3, v{VL}')
k.e('v_lshl_add_u32 v2, v3, 3, v2')
k.e(f's_add_u32 s{T6}, s{T6}, {KVB}')
k.e(f'v_add_u32 v{PKV}, s{T6}, v2')
k.srd(R_G, P_WS, WS_G)
k.e(f's_mul_i32 s{T0}, s{SCL}, {CB:#x}')
k.e(f's_add_u32 s{T0}, s{T0}, {WS_CL:#x}')
k.e(f's_add_u32 s{R_CL}, s{P_WS}, s{T0}')
k.e(f's_addc_u32 s{R_CL+1}, s{P_WS+1}, 0')
k.e(f's_and_b32 s{R_CL+1}, s{R_CL+1}, 0xffff')
k.e(f's_mov_b32 s{R_CL+2}, {CB:#x}')
k.e(f's_mov_b32 s{R_CL+3}, 0x20000')
k.srd(R_B, P_W1, 512*2752)
k.srd(R_C, P_W2, 1376*1024)
k.e(f's_mov_b32 s{SSPIN}, {SPIN_LIMIT}')
k.e(f's_lshl_b32 s{SW10}, s{SW}, 10')
k.e(f's_lshl_b32 s{SWG}, s{SW}, 14')
k.e(f's_add_u32 s{SWG}, s{SWG}, s{T3}')
k.e(f's_lshl_b32 s{SWL}, s{SW}, 11')
k.e(f's_lshl_b32 s{SFLW}, s{SJ}, 5')
k.e(f's_lshl_b32 s{T1}, s{SW}, 2')
k.e(f's_add_u32 s{SFLW}, s{SFLW}, s{T1}')
k.e(f's_add_u32 s{SFLW}, s{SFLW}, {C_FL:#x}')
k.e(f's_lshl_b32 s{T1}, s{SJ}, 2')
k.e(f's_lshl_b32 s{T2}, s{SM}, 1')
k.e(f's_add_u32 s{T1}, s{T1}, s{T2}')
k.e(f's_add_u32 s{T1}, s{T1}, s{SKH}')
k.e(f's_lshl_b32 s{SFRAG}, s{SN}, 5')
k.e(f's_add_u32 s{SFRAG}, s{SFRAG}, s{T1}')
k.e(f's_lshl_b32 s{SFRAG}, s{SFRAG}, 10')
k.e(f's_lshl_b32 s{T0}, s{SCL}, 1')
k.e(f's_add_u32 s{T0}, s{T0}, s{SN}')
k.e(f's_lshl_b32 s{SROW}, s{T0}, 15')
k.e(f's_lshl_b32 s{T1}, s{T1}, 5')
k.e(f's_add_u32 s{SROW}, s{SROW}, s{T1}')
k.e(f'v_lshlrev_b32 v{VPF}, 7, v{VL}')
def att_setup():
    k.e(f'v_mov_b32 v{VB[0]}, 0')
    k.e('s_mov_b32 exec_lo, 0x11')
    k.e('s_mov_b32 exec_hi, 0x11')
    k.e(f'v_mov_b32 v{VB[0]}, s{SONE}')
    k.e('s_mov_b64 exec, -1')
    for r in range(VB[0]+1, VB[1]+8): k.e(f'v_mov_b32 v{r}, v{VB[0]}')
    k.e(f'v_mov_b32 v{VIDX}, 0xdddddddd')
    k.e(f's_lshl_b32 s{T0}, s{SKH}, 10')
    k.e(f'v_add_u32 v{VK}, s{T0}, v{VL16}')
    k.e(f'v_and_b32 v2, 15, v{VL}')
    k.e(f'v_lshl_add_u32 v2, v{VH}, 4, v2')
    k.e(f's_add_u32 s{T0}, s{T0}, 65536')
    k.e(f'v_lshl_add_u32 v{VV}, v2, 4, s{T0}')
    k.e(f's_mov_b32 s{SMASK}, 0xffff0000')
    k.e(f's_mov_b32 s{SMASK+1}, 0xffff0000')
    k.e(f's_mul_i32 s{STILE}, s{SJ}, 5')
    k.e(f's_min_u32 s{T0}, s{SJ}, 3')
    k.e(f's_add_u32 s{STILE}, s{STILE}, s{T0}')
    k.e(f's_add_u32 s{T0}, s{SM}, 4')
    k.e(f's_cmp_lt_u32 s{SW}, 4')
    k.e(f's_cselect_b32 s{T0}, s{SW}, s{T0}')
    k.e(f's_add_u32 s{STILE}, s{STILE}, s{T0}')
    k.e(f'v_lshrrev_b32 v2, 2, v{VL}')
    k.e(f'v_and_b32 v3, 3, v{VL}')
    k.e('v_lshlrev_b32 v3, 4, v3')
    k.e(f's_movk_i32 s{T0}, 2752')
    k.e(f'v_mad_u32_u24 v{VW1}, v2, s{T0}, v3')
    k.e(f'v_bfe_u32 v2, v{VL}, 2, 2')
    k.e(f'v_lshl_add_u32 v2, v{VH}, 2, v2')
    k.e('v_lshlrev_b32 v2, 6, v2')
    k.e('v_lshrrev_b32 v3, 1, v3')
    k.e('v_add_u32 v2, v2, v3')
    k.e(f'v_bfe_u32 v3, v{VL}, 4, 1')
    k.e('v_lshl_add_u32 v2, v3, 5, v2')
    k.e(f's_lshl_b32 s{SW1L}, s{SW}, 12')
    k.e(f's_add_u32 s{SW1L}, s{SW1L}, {STG}')
    k.e(f'v_add_u32 v{VST}, s{SW1L}, v2')
    k.e(f's_lshl_b32 s{SW1G}, s{STILE}, 6')
att_setup()
stamp(24)
SCW = KVB + 16384
def m4(d, b, bt, first, ones=None):
    k.e(f'v_mfma_f32_4x4x4_16b_bf16 {v(d,4)}, {ones or ONES2}, {R(bt,b,2)}, {"0" if first else v(d,4)}')
def st_reads():
    for i in range(8): k.e(f'ds_read_b128 {v(BV+4*i,4)}, v{80+i}')
def st_dots(lo, hi):
    for q in range(BV+4*lo, BV+4*hi):
        k.e(f'v_dot2c_f32_bf16 v{VS1}, s{SONE}, v{q}')
        k.e(f'v_dot2c_f32_bf16 v{VS2}, v{q}, v{q}')
def st_combine():
    k.e(f's_lshl_b32 s{T0}, s{SNX}, 8')
    k.e(f's_add_u32 s{T0}, s{T0}, s{T6}')
    k.e(f's_add_u32 s{T0}, s{T0}, 16384')
    k.e(f'v_permlane32_swap_b32 v{VS1}, v{VS2}')
    k.e(f'v_lshl_add_u32 v95, v{VL}, 2, s{T0}')
    k.e(f'v_add_f32 v{VS1}, v{VS1}, v{VS2}')
def stats_issue(d, nreg):
    k.e(f'v_and_b32 v2, 31, v{VL}')
    k.e(f's_lshl_b32 s{T0}, s{nreg}, 8')
    k.e(f's_add_u32 s{T0}, s{T0}, {SCW}')
    k.e(f'v_lshl_add_u32 v2, v2, 2, s{T0}')
    for q in range(4):
        k.e(f'ds_read_b32 v{d+2*q}, v2 offset:{q*4096}')
        k.e(f'ds_read_b32 v{d+2*q+1}, v2 offset:{q*4096+128}')
def stats_fin(d):
    for e in range(2):
        k.e(f'v_add_f32 v{d+e}, v{d+e}, v{d+2+e}')
        k.e(f'v_add_f32 v{d+4+e}, v{d+4+e}, v{d+6+e}')
    for e in range(2): k.e(f'v_add_f32 v{d+e}, v{d+e}, v{d+4+e}')
    mean_rstd(d, d+1)
QB_, QA_ = 32, 48
def q_half(hf, hooks={}, pre=0):
    def rd(i):
        k.e(f'ds_read_b128 {a_(QB_+4*(i%4),4)}, v{PB+(i&3)} offset:{(i>>2)*16384}')
        for t in range(2):
            k.e(f'ds_read_b64_tr_b16 {a_(QA_+4*(i%4)+2*t,2)}, v{PA} offset:{i*4096 + t*512}')
    i0 = 8*hf
    rd(i0); rd(i0+1)
    for i in range(i0, i0+8, 2):
        if i+2 < i0+8:
            if pre and i == i0: k.e('s_waitcnt lgkmcnt(6)')
            rd(i+2); rd(i+3)
            k.e('s_waitcnt lgkmcnt(6)')
        else:
            k.e('s_waitcnt lgkmcnt(0)')
        for e in range(2):
            a = QA_+4*((i+e)%4)
            m4(CQ+8*e, a, 'a', i == 0)
            m4(CQ+8*e+4, a+2, 'a', i == 0)
        for e in range(2):
            mf(ACC, QA_+4*((i+e)%4), QB_+4*((i+e)%4), None if i+e == 0 else ACC, at='a', bt='a')
        if i in hooks: hooks[i]()
def q_stats():
    stats_fin(80)
    k.e(f'v_mul_f32 v92, {f2u(QS):#x}, v81')
    k.e('v_sub_f32 v80, 0, v80')
    k.e('v_cvt_pk_bf16_f32 v88, v80, v80')
    k.e('v_mov_b32 v90, 0')
    k.e('v_and_b32 v81, 0xffff0000, v88')
    k.e('v_sub_f32 v81, v80, v81')
    k.e('v_mov_b32 v91, 0')
    k.e('v_cvt_pk_bf16_f32 v89, v81, v90')
def zero_o():
    for r in range(4): k.e(f'v_mov_b32 v{KB[1]+r}, 0') if False else None
lcrit, lq, lq1, lqx, lFV = k.label('crit'), k.label('qproj'), k.label('q1'), k.label('qx'), k.label('FV')
k.e(f's_cmp_ge_u32 s{SJ}, 2')
k.e(f's_cselect_b32 s{T0}, 4, s{SW}')
k.e(f's_cmp_lt_u32 s{T0}, 4')
k.e(f's_cbranch_scc1 {lcrit}')
k.e('s_waitcnt vmcnt(8)')
st_reads()
k.e('s_waitcnt lgkmcnt(4)')
st_dots(0, 4)
k.e('s_waitcnt lgkmcnt(0)')
st_dots(4, 8)
st_combine()
stamp()
lpo = k.label('pord')
k.e(f's_cmp_lt_u32 s{SJ}, 2')
k.e(f's_cbranch_scc1 {lpo}')
k.e('s_waitcnt vmcnt(4)')
k.e('s_barrier')
k.e(f'ds_write_b32 v95, v{VS1}')
k.e(f's_branch {lq}')
k.e(f'{lpo}:')
k.e(f's_lshl_b32 s{T0}, s{SKC}, 16')
k.e(f's_add_u32 s{T0}, s{T0}, s{T3}')
k.e(f's_lshl_b32 s{T1}, s{SKC}, 13')
k.e('s_waitcnt vmcnt(0)')
k.e('s_barrier')
k.e(f'ds_write_b32 v95, v{VS1}')
for u in range(8): dma(VOW, R_D, T1, WB + 32768 + u*1024, T0, 262144 + u*8192)
k.e(f's_branch {lq}')
k.e(f'{lcrit}:')
k.e('s_setprio 3')
FA = 0
k.e('s_waitcnt vmcnt(8)')
st_reads()
k.e('s_waitcnt lgkmcnt(4)')
st_dots(0, 4)
k.e('s_waitcnt vmcnt(0) lgkmcnt(0)')
for i in range(8):
    if i == 7: k.e('s_waitcnt lgkmcnt(8)')
    for t in range(2):
        k.e(f'ds_read_b64_tr_b16 {a_(FA+4*i+2*t,2)}, v{PKV} offset:{i*512 + t*128}')
st_dots(4, 8)
k.e('s_waitcnt lgkmcnt(0)')
for i in range(16): m4(CQ+4*(i%4), FA+2*i, 'a', i < 4)
for i in range(8): mf(ACC, FA+4*i, BV+4*i, None if i == 0 else ACC, at='a')
st_combine()
k.e(f'ds_write_b32 v95, v{VS1}')
k.e(f'v_add_f32 v{CQ}, v{CQ}, v{CQ+4}')
k.e(f'v_add_f32 v{CQ+8}, v{CQ+8}, v{CQ+12}')
k.e(f'v_add_f32 v{CQ}, v{CQ}, v{CQ+8}')
k.e(f'v_mov_b32 v{CQ+1}, v{CQ}')
k.e(f's_add_u32 s{T0}, s{T6}, {16384+512}')
k.e(f'v_lshl_add_u32 v3, v{VL}, 2, s{T0}')
k.e(f'v_permlane32_swap_b32 v{CQ}, v{CQ+1}')
k.e(f'v_add_u32 v2, s{T6}, v{VL16}')
k.e(f'v_add_f32 v{CQ}, v{CQ}, v{CQ+1}')
k.e(f'ds_write_b32 v3, v{CQ}')
for q in range(4): k.e(f'ds_write_b128 v2, {v(ACC+4*q,4)} offset:{q*1024}')
k.e(f's_lshl_b32 s{T4}, s{SCL}, 1')
k.e(f's_add_u32 s{T4}, s{T4}, s{SJ}')
k.e(f'v_add_u32 v90, s{SWL}, v{VL16}')
k.e(f'v_add_u32 v90, {KVB}, v90')
k.e(f's_lshl_b32 s{T0}, s{SW}, 6')
k.e(f's_add_u32 s{T0}, s{T0}, {SCW+512}')
k.e(f'v_lshl_add_u32 v91, v{VH}, 4, s{T0}')
k.e('s_waitcnt lgkmcnt(0)')
stamp(18)
k.e('s_barrier')
stamp(19)
k.e(f's_cmp_ge_u32 s{SW}, 2')
k.e(f's_cbranch_scc1 {lq}')
stats_issue(80, SJ)
for p in range(3):
    for q in range(2): k.e(f'ds_read_b128 {v(16+8*p+4*q,4)}, v90 offset:{p*4096 + q*1024}')
k.e('s_waitcnt lgkmcnt(5)')
for q in range(2): k.e(f'ds_read_b128 {v(40+4*q,4)}, v90 offset:{3*4096 + q*1024}')
for p in range(4):
    for q in range(2): k.e(f'ds_read_b128 {v(48+8*p+4*q,4)}, v91 offset:{p*4096 + q*32}')
stats_fin(80)
k.e('s_waitcnt lgkmcnt(8)')
for r in range(8): k.e(f'v_add3_u32 v0, v0, v0, v0') if False else None
for r in range(16): k.e(f'v_add_f32 v{16+r}, v{16+r}, v{32+r}')
for r in range(8): k.e(f'v_add_f32 v{16+r}, v{16+r}, v{24+r}')
for p in range(4):
    k.e(f's_waitcnt lgkmcnt({6-2*p})')
    for r in range(8): k.e(f'v_fma_f32 v{16+r}, -v80, v{48+8*p+r}, v{16+r}')
for r in range(8): k.e(f'v_mul_f32 v{16+r}, v81, v{16+r}')
PK = 84
for r in range(4): k.e(f'v_cvt_pk_bf16_f32 v{PK+r}, v{16+2*r}, v{17+2*r}')
k.e(f's_lshl_b32 s{T0}, s{T4}, 10')
lfj = k.label('fj')
k.e(f's_cmp_eq_u32 s{SW}, 1')
k.e(f's_cbranch_scc1 {lFV}')
k.e(f'buffer_store_dwordx4 {v(PK,4)}, v{VL16}, {srd(R_G)}, s{T0} offen sc1')
k.e(f'{lfj}:')
k.e('v_mul_f32 v88, v16, v16')
k.e('v_mul_f32 v89, v17, v17')
for r in range(2, 8): k.e(f'v_fmac_f32 v{88+(r&1)}, v{16+r}, v{16+r}')
k.e('v_add_f32 v88, v88, v89')
k.e(f's_lshl_b32 s{T0}, s{T4}, 4')
k.e('v_mov_b32 v89, v88')
k.e(f's_lshl_b32 s{T1}, s{SW}, 3')
k.e(f's_add_u32 s{T0}, s{T0}, s{T1}')
k.e('v_permlane32_swap_b32 v88, v89')
k.e(f's_add_u32 s{T0}, s{T0}, {WS_MX:#x}')
k.e('v_add_f32 v88, v88, v89')
k.e('v_and_b32 v88, 0x7fffffff, v88')
k.e(f'v_lshrrev_b32 v95, 2, v{VL}')
k.e('s_nop 0')
for sh in (8, 4, 2, 1):
    k.e(f'v_max_u32_dpp v88, v88, v88 row_ror:{sh} row_mask:0xf bank_mask:0xf')
    if sh > 1: k.e('s_nop 1')
k.e('s_mov_b64 exec, 0x10001')
k.e(f'buffer_store_dword v88, v95, {srd(R_G)}, s{T0} offen sc1')
k.e('s_mov_b64 exec, -1')
stamp(20)
k.e('v_mov_b32 v3, 0')
k.e('v_mov_b32 v15, 1')
k.e('v_mov_b32 v14, 0')
k.e('s_waitcnt vmcnt(0)')
k.e('s_barrier')
lna = k.label('noatom')
k.e(f's_cmp_lg_u32 s{SW}, 0')
k.e(f's_cbranch_scc1 {lna}')
k.e('s_mov_b64 exec, 1')
k.e(f'global_atomic_add v14, v3, v15, s[{P_DBG}:{P_DBG+1}] sc0 sc1')
k.e('s_mov_b64 exec, -1')
k.e(f'{lna}:')
stamp(21)
q_half(0)
k.e('s_waitcnt vmcnt(0)')
k.e(f'v_readfirstlane_b32 s{T0}, v14')
stamp(22)
k.e('s_nop 3')
k.e(f's_cmp_lg_u32 s{T0}, 63')
k.e(f's_cbranch_scc1 {lq1}')
k.e('s_mov_b64 exec, 1')
k.e(f'global_store_dword v3, v15, s[{P_DBG}:{P_DBG+1}] offset:192 sc1')
k.e('s_mov_b64 exec, -1')
k.e(f's_branch {lq1}')
k.e(f'{lFV}:')
SC_VT = SCW + 1024
k.e(f'v_and_b32 v2, 31, v{VL}')
k.e('v_lshlrev_b32 v2, 5, v2')
k.e(f'v_lshl_add_u32 v2, v{VH}, 3, v2')
k.e(f'v_add_u32 v2, {SC_VT}, v2')
k.e(f'ds_write_b64 v2, {v(PK,2)}')
k.e(f'ds_write_b64 v2, {v(PK+2,2)} offset:16')
k.e(f'v_lshrrev_b32 v2, 4, v{VL}')
k.e('v_lshlrev_b32 v2, 8, v2')
k.e(f'v_and_b32 v3, 15, v{VL}')
k.e('v_lshl_add_u32 v2, v3, 3, v2')
k.e(f'v_add_u32 v2, {SC_VT}, v2')
k.e(f's_add_u32 s{T0}, s{T0}, {WS_V:#x}')
k.e('s_waitcnt lgkmcnt(0)')
k.e(f'ds_read_b64_tr_b16 {a_(0,2)}, v2')
k.e(f'ds_read_b64_tr_b16 {a_(2,2)}, v2 offset:128')
k.e('s_waitcnt lgkmcnt(0)')
k.e(f'buffer_store_dwordx4 {a_(0,4)}, v{VL16}, {srd(R_G)}, s{T0} offen sc1')
k.e(f's_branch {lfj}')
k.e(f'{lq}:')
k.e('s_setprio 0')
stamp()
q_half(0)
k.e('s_waitcnt vmcnt(0)')
k.e('s_barrier')
k.e(f'{lq1}:')
stats_issue(80, SN)
def hk_a():
    q_stats()
def hk_b():
    k.e('s_barrier')
    for r in range(OA, OA+16): k.e(f'v_mov_b32 v{r}, 0')
def hk_c():
    for r in range(OB, OB+16): k.e(f'v_mov_b32 v{r}, 0')
    k.srd(R_D, P_WO, 512*1024)
q_half(1, {8: hk_a, 10: hk_c, 12: hk_b}, pre=8)
stamp(32)
k.e('s_setprio 0')
k.e(f'v_add_u32 v12, s{SW1L}, v{VL16}')
k.e('v_xor_b32 v13, 0x2000, v12')
k.e(f'v_lshlrev_b32 v2, 8, v{VL}')
k.e(f'v_add_f32 v{CQ}, v{CQ}, v{CQ+4}')
k.e(f'v_add_f32 v{CQ+8}, v{CQ+8}, v{CQ+12}')
k.e('v_mov_b32 v86, 0')
k.e(f'v_add_f32 v{CQ}, v{CQ}, v{CQ+8}')
k.e('v_mov_b32 v87, 0')
k.e(f'v_cvt_pk_bf16_f32 v85, v{CQ}, v86')
k.e('v_lshlrev_b32 v84, 16, v85')
k.e(f'v_sub_f32 v84, v{CQ}, v84')
k.e(f'v_cvt_pk_bf16_f32 v84, v{CQ}, v84')
k.e('s_mov_b64 exec, 7')
k.e(f'buffer_store_dword v86, v2, {srd(R_CL)}, s{SFLW} offen sc1')
k.e('s_mov_b64 exec, -1')
mf(ACC, 84, 88, ACC)
k.e(f'v_mov_b32 v{VQ2}, 0')
k.e(f'v_mov_b32 v{MB}, 0')
k.e('s_nop 7')
k.e('s_nop 1')
for q in range(4): k.e(f'ds_write_b128 v12, {v(ACC+4*q,4)} offset:{q*1024}')
k.e('s_waitcnt lgkmcnt(0)')
k.e('s_barrier')
for q in range(4): k.e(f'ds_read_b128 {v(32+4*q,4)}, v13 offset:{q*1024}')
for q in range(4):
    k.e(f's_waitcnt lgkmcnt({3-q})')
    for r in range(4*q, 4*q+4, 2): k.e(f'v_pk_add_f32 {v(ACC+r,2)}, {v(ACC+r,2)}, {v(32+r,2)}')
for r in range(0, 16, 2): k.e(f'v_pk_mul_f32 {v(ACC+r,2)}, v[92:93], {v(ACC+r,2)} op_sel:[0,0] op_sel_hi:[0,1]')
for r in range(8): k.e(f'v_cvt_pk_bf16_f32 v{QA+r}, v{ACC+2*r}, v{ACC+2*r+1}')
for r in range(4):
    k.e(f'v_dot2c_f32_bf16 v{VQ2}, v{QA+r}, v{QA+r}')
    k.e(f'v_dot2c_f32_bf16 v{MB}, v{QB+r}, v{QB+r}')
k.e('s_nop 2')
k.e(f'v_permlane32_swap_b32 v{VQ2}, v{MB}')
k.e('s_nop 1')
k.e(f'v_add_f32 v{VQ2}, v{VQ2}, v{MB}')
stamp()
lp, lpd = k.label('kvpoll'), k.label('kvpd')
k.e(f's_cmp_lg_u32 s{SW}, {E("POLLW", 0)}')
k.e(f's_cbranch_scc1 {lpd}')
k.e('v_mov_b32 v2, 0')
k.e('s_mov_b64 exec, 1')
k.e(f'{lp}:')
k.e(f'global_load_dword v3, v2, s[{P_DBG}:{P_DBG+1}] offset:192 sc1')
k.e(f's_sub_u32 s{SSPIN}, s{SSPIN}, 1')
k.e(f's_cbranch_scc1 {LEND}')
k.e('s_waitcnt vmcnt(0)')
k.e(f'v_readfirstlane_b32 s{T0}, v3')
k.e('s_nop 3')
k.e(f's_cmp_eq_u32 s{T0}, 1')
k.e(f's_cbranch_scc1 {lpd}')
k.e(f's_sleep {E("KVSLEEP", 1)}')
k.e(f's_branch {lp}')
k.e(f'{lpd}:')
k.e('s_mov_b64 exec, -1')
k.e('s_barrier')
stamp()
def kv_issue(st):
    for kv in range(2):
        off = st*8192 + kv*65536
        dma(VL16, R_G, SW10, off, SW10, off, 'sc1')
kv_issue(0)
k.e(f's_mov_b32 s{T0}, {WS_MX:#x}')
k.e(f'buffer_load_dwordx4 v[12:15], v{VL16}, {srd(R_G)}, s{T0} offen sc1')
kv_issue(1); kv_issue(2)
k.e('s_waitcnt vmcnt(4)')
k.e('s_barrier')
stamp()
k.e(f'ds_read_b128 {v(KB[0],4)}, v{VK}')
k.e(f'ds_read_b128 {v(KB[1],4)}, v{VK} offset:2048')
k.e(f's_mov_b64 exec, s[{SMASK}:{SMASK+1}]')
k.e(f'ds_read_b128 {v(VB[0],4)}, v{VV}')
k.e(f'ds_read_b128 {v(VB[0]+4,4)}, v{VV} offset:512')
k.e('s_mov_b64 exec, -1')
k.e('v_max_u32 v12, v12, v13')
k.e('v_max_u32 v13, v14, v15')
k.e('s_nop 1')
k.e('v_permlane32_swap_b32 v12, v13')
k.e('s_nop 1')
k.e('v_max_u32 v12, v12, v13')
for sh in (8, 4, 2, 1):
    k.e('s_nop 1')
    k.e(f'v_max_u32_dpp v12, v12, v12 row_ror:{sh} row_mask:0xf bank_mask:0xf')
k.e('s_waitcnt lgkmcnt(3)')
mf(SA, KB[0], QA)
k.e(f'v_readlane_b32 s{T0}, v12, 0')
k.e(f'v_readlane_b32 s{T2}, v12, 16')
k.e(f'v_readlane_b32 s{T1}, v12, 32')
k.e(f'v_readlane_b32 s{T3}, v12, 48')
k.e(f'v_mov_b32 v13, {f2u(TSAFE*TSAFE):#x}')
k.e('s_nop 2')
k.e(f's_max_u32 s{T0}, s{T0}, s{T2}')
k.e(f's_max_u32 s{T1}, s{T1}, s{T3}')
k.e(f'v_mul_f32 v{VQ2}, s{T0}, v{VQ2}')
k.e(f'v_cmp_nle_f32 vcc, v{VQ2}, v13')
lfb, lepi = k.label('fallback'), k.label('attepi')
k.e(f's_cmp_gt_u32 s{T1}, {f2u(2.0**120):#x}')
k.e(f's_cbranch_scc1 {lfb}')
k.e('s_nop 2')
k.e('s_cmp_lg_u64 vcc, 0')
k.e(f's_cbranch_scc1 {lfb}')
if 'fb' in OPT: k.e(f's_branch {lfb}')

def sm(o, a, b): k.e(f'v_smfmac_f32_32x32x32_bf16 {v(o,16)}, {v(a,4)}, {v(b,8)}, v{VIDX}')
W1SC = 'nt' if 'w1nt' in OPT else ''
def w1_issue(t):
    for u in range(2): dma(VW1, R_B, SW1L, (t&1)*2048 + u*1024, SW1G, (2*t+u)*16*2752, W1SC)
def w1_fetch(t):
    for u in range(2):
        for tt in range(2):
            k.e(f'ds_read_b64_tr_b16 {a_(8*t+4*u+2*tt,2)}, v{VST} offset:{(t&1)*2048 + u*1024 + tt*512}')
W0 = E('W0', 10)
IWO = E('IWO', 28)
PF1, PF2 = E('PF1', 19), E('PF2', 13)
PR = [int(x) for x in os.environ.get('PRIO', '22,28,31').split(',')]
L_WO = [2048, 67584]; L_O = [34816, 100352]; L_X = 133120
def cluster_word(spin):
    lcw, lcw2 = k.label('cw'), k.label('cw2')
    k.e(f'{lcw}:')
    k.e('s_waitcnt vmcnt(0)')
    k.e(f'v_readfirstlane_b32 s{T0}, v15')
    k.e('s_nop 3')
    k.e(f's_lshr_b32 s{T1}, s{T0}, 16')
    k.e(f's_cmp_eq_u32 s{T1}, 0xff')
    k.e(f's_cbranch_scc1 {lcw2}')
    k.e(f's_sub_u32 s{SSPIN}, s{SSPIN}, 1')
    k.e(f's_cbranch_scc1 {LEND}')
    k.e('s_sleep 4')
    k.e(f'global_load_dword v15, v14, s[{P_DBG}:{P_DBG+1}] offset:4 sc1')
    k.e(f's_branch {lcw}')
    k.e(f'{lcw2}:')
    k.e(f's_and_b32 s{T0}, s{T0}, 0xffff')
    k.e(f's_bcnt1_i32_b32 s{T0}, s{T0}')
    k.e(f's_cmp_eq_u32 s{T0}, 1')
    k.e(f's_cselect_b32 s{SFAST}, {0 if "slow" in OPT else 1}, 0')
def attention(fb):
    def ex(r, M):
        if fb: k.e(f'v_sub_f32 v{r}, v{r}, v{M}')
        k.e(f'v_exp_f32 v{r}, v{r}')
    def phase(X, Y, OX, OY, QY, MX, Vprev1, Vcur0, Kf, mid=None, first=False, last=False, cs=None):
        ex(X, MX); ex(X+1, MX)
        if not first: sm(OY, Vprev1, Y+8)
        for r in range(2, 5): ex(X+r, MX)
        if not last: mf(Y, Kf, QY)
        for r in range(5, 10): ex(X+r, MX)
        sm(OX, Vcur0, X)
        if mid: mid()
        for r in range(10, 16):
            ex(X+r, MX)
            if cs is not None and r == 13: m4(CSA, cs, 'a', cs == 0)
            if cs is not None and r == 15: m4(CSA, cs+2, 'a', False)
    k.e('s_setprio 3')
    vm = []
    def pf(slot):
        k.e(f's_lshr_b32 s{T0}, s2, 3')
        k.e(f's_lshl_b32 s{T1}, s{SW}, 5')
        if slot == 0: k.e(f's_xor_b32 s{T1}, s{T1}, 0xe0')
        k.e(f's_add_u32 s{T0}, s{T0}, s{T1}')
        k.e(f's_lshl_b32 s{T0}, s{T0}, 13')
        k.e(f'buffer_load_dword v2, v{VPF}, {srd(R_C if slot == 0 else R_D)}, s{T0} offen')
        vm.append('pf')
    def w1i(c):
        w1_issue(c); vm.extend([c, c])
    for i in range(32):
        p = i & 1
        if i == 2:
            k.e('s_waitcnt vmcnt(10)')
            k.e('s_barrier')
        if i == 6:
            k.e('s_waitcnt vmcnt(2) lgkmcnt(0)')
            k.e('s_barrier')
        for lv in range(3):
            if i == PR[lv]: k.e(f's_setprio {2-lv}')
        def midA():
            if i+2 < 32: k.e(f'ds_read_b128 {v(KB[p],4)}, v{VK} offset:{2048*(i+2)}')
            if i+1 < 32:
                k.e(f's_mov_b64 exec, s[{SMASK}:{SMASK+1}]')
                k.e(f'ds_read_b128 {v(VB[1-p],4)}, v{VV} offset:{2048*(i+1)}')
                k.e(f'ds_read_b128 {v(VB[1-p]+4,4)}, v{VV} offset:{2048*(i+1)+512}')
                k.e('s_mov_b64 exec, -1')
            if i == 0: kv_issue(3)
            if i == 1: kv_issue(6)
            if i == 2:
                k.e(f's_lshr_b32 s{T0}, s2, 3')
                k.e(f's_lshl_b32 s{T1}, s{SW}, 5')
                k.e(f's_add_u32 s{T0}, s{T0}, s{T1}')
                k.e(f's_lshl_b32 s{T0}, s{T0}, 13')
                k.e(f'buffer_load_dword v2, v{VPF}, {srd(R_B)}, s{T0} offen')
                k.e(f's_lshl_b32 s{T0}, s{SJ}, 3')
                k.e(f's_add_u32 s{T0}, s{T0}, s{SW}')
                k.e(f's_mul_i32 s{T0}, s{T0}, 2560')
                k.e('s_mov_b64 exec, 0xfffff')
                k.e(f'buffer_load_dword v3, v{VPF}, {srd(R_CL)}, s{T0} offen sc1')
                k.e('s_mov_b64 exec, -1')
            if 0 <= i - W0 < 2: w1i(i - W0)
            if i == E('PTF', 28):
                k.e(f's_lshl_b32 s{T0}, s{SJ}, 14')
                k.e(f's_add_u32 s{T0}, s{T0}, s{SWL}')
                k.e(f's_add_u32 s{T0}, s{T0}, {C_F:#x}')
                k.e('s_mov_b64 exec, 0xffff')
                k.e(f'buffer_load_dword v3, v{VPF}, {srd(R_CL)}, s{T0} offen sc1')
                k.e('s_mov_b64 exec, -1')
                vm.append('pt')
            if i == PF1: pf(0)
            if i == PF2: pf(1)
            if i in (3, 18):
                k.e(f's_lshl_b32 s{T0}, s{SW}, 2')
                k.e(f'v_mov_b32 v12, s{T0}')
                k.e(f'v_mov_b32 v13, {0 if i == 3 else 1}')
                k.e('ds_write_b32 v12, v13')
            if i == IWO:
                k.e(f'v_and_b32 v12, 7, v{VL}')
                k.e('v_lshlrev_b32 v12, 2, v12')
                k.e('ds_read_b32 v13, v12')
            if i == 31: cluster_word(True)
        def midB():
            if i == 0: kv_issue(4); kv_issue(5)
            if i == 1: kv_issue(7)
            if i == 6:
                k.e(f'buffer_load_dwordx4 {v(XRES,4)}, v{VROW}, {srd(R_A)}, s{SROW} offen')
                la = k.label('noat')
                k.e(f's_cmp_lg_u32 s{SW}, 7')
                k.e(f's_cbranch_scc1 {la}')
                k.e(f's_getreg_b32 s{T0}, hwreg(HW_REG_XCC_ID, 0, 4)')
                k.e(f's_lshl_b32 s{T0}, 1, s{T0}')
                k.e(f's_add_u32 s{T1}, s{SJ}, 16')
                k.e(f's_lshl_b32 s{T1}, 1, s{T1}')
                k.e(f's_or_b32 s{T0}, s{T0}, s{T1}')
                k.e(f's_lshl_b32 s{T1}, s{SCL}, 2')
                k.e(f'v_mov_b32 v14, s{T1}')
                k.e(f'v_mov_b32 v15, s{T0}')
                k.e('s_mov_b64 exec, 1')
                k.e(f'global_atomic_or v14, v15, s[{P_DBG}:{P_DBG+1}] offset:4 sc1')
                k.e('s_mov_b64 exec, -1')
                k.e(f'{la}:')
            c = i - W0 - 2
            if 0 <= c < 16:
                last = len(vm) - 1 - vm[::-1].index(c)
                k.e(f's_waitcnt vmcnt({len(vm) - 1 - last})')
                w1_fetch(c)
            if i == IWO:
                lsp, lok = k.label('sp'), k.label('ok')
                k.e(f'{lsp}:')
                k.e('s_waitcnt lgkmcnt(0)')
                k.e('v_cmp_ne_u32 vcc, 1, v13')
                k.e('s_nop 1')
                k.e('s_cmp_eq_u64 vcc, 0')
                k.e(f's_cbranch_scc1 {lok}')
                k.e('s_sleep 2')
                k.e('ds_read_b32 v13, v12')
                k.e(f's_branch {lsp}')
                k.e(f'{lok}:')
                for kc in range(4): wchunk(R_D, L_WO[kc >> 1] + (kc & 1)*16384, kc)
                k.e(f's_lshl_b32 s{T1}, s{SCL}, 2')
                k.e(f'v_mov_b32 v14, s{T1}')
                k.e(f'global_load_dword v15, v14, s[{P_DBG}:{P_DBG+1}] offset:4 sc1')
        k.e('s_waitcnt lgkmcnt(0)')
        if 2 <= i - 1 - W0 < 16: w1i(i - 1 - W0)
        cc = i - W0 - 3
        csA, csB = (8*cc, 8*cc+4) if 0 <= cc < 16 else (None, None)
        phase(SA, SB, OA, OB, QB, MA, VB[1-p]+4, VB[p], KB[p], midA, first=(i == 0), cs=csA)
        phase(SB, SA, OB, OA, QA, MB, VB[p]+4, VB[p], KB[1-p], midB, last=(i == 31), cs=csB)
    k.e(f'v_add_u32 v12, s{SW1L}, v{VL16}')
    k.e('v_xor_b32 v13, 0x2000, v12')
    sm(OB, VB[1]+4, SB+8)
attention(False)
k.e(f'{lepi}:')
stamp()
l1, l2 = k.label('kh1'), k.label('khj')
k.e(f's_cmp_eq_u32 s{SKH}, 1')
k.e(f's_cbranch_scc1 {l1}')
k.e('s_nop 7')
k.e('s_nop 2')
k.e(f'ds_write_b128 v12, {v(OB+8,4)}')
k.e(f'ds_write_b128 v12, {v(OB+12,4)} offset:1024')
k.e(f'ds_write_b32 v12, v{OB} offset:2048')
k.e(f's_branch {l2}')
k.e(f'{l1}:')
k.e(f'ds_write_b128 v12, {v(OA+8,4)}')
k.e(f'ds_write_b128 v12, {v(OA+12,4)} offset:1024')
k.e(f'ds_write_b32 v12, v{OA} offset:2048')
k.e('s_nop 6')
k.e('s_waitcnt lgkmcnt(0)')
k.e(f'v_mov_b32 v{OA}, v{OB}')
for r in range(8, 16): k.e(f'v_mov_b32 v{OA+r}, v{OB+r}')
k.e(f'{l2}:')
k.e('s_waitcnt lgkmcnt(0)')
k.e('s_barrier')
k.e(f'ds_read_b32 v{SA}, v13 offset:2048')
k.e(f'ds_read_b128 {v(SA+8,4)}, v13')
k.e(f'ds_read_b128 {v(SA+12,4)}, v13 offset:1024')
SKQ = 79
k.e(f's_lshl_b32 s{SKQ}, s{SM}, 1')
k.e(f's_add_u32 s{SKQ}, s{SKQ}, s{SKH}')
k.e(f's_lshl_b32 s{T0}, s{SKQ}, 11')
k.e(f's_add_u32 s{T0}, s{T0}, {L_WO[0]}')
addrA_128(120, 2, T0, msw=False)
k.e('v_xor_b32 v121, 64, v120')
k.e('v_add_u32 v124, 0x10000, v120')
k.e('v_add_u32 v125, 0x10000, v121')
k.e('s_waitcnt lgkmcnt(2)')
k.e(f'v_add_f32 v{OA}, v{OA}, v{SA}')
k.e(f'v_rcp_f32 v{OA}, v{OA}')
k.e('s_waitcnt lgkmcnt(0)')
for r in range(8, 16, 2): k.e(f'v_pk_add_f32 {v(OA+r,2)}, {v(OA+r,2)}, {v(SA+r,2)}')
for r in range(8, 16, 2): k.e(f'v_pk_mul_f32 {v(OA+r,2)}, {v(OA,2)}, {v(OA+r,2)} op_sel:[0,0] op_sel_hi:[0,1]')
for i in range(4): k.e(f'v_cvt_pk_bf16_f32 v{SA+i}, v{OA+8+2*i}, v{OA+9+2*i}')
pub_store([f'buffer_store_dwordx4 {v(SA,4)}, v{VL16}, {srd(R_CL)}, s{SFRAG} offen'])
def slab_addr(c, e, m):
    return ((124 if c >= 2 else 120) + m, (c & 1)*16384 + e*8192)
def slab_frag(i, t, dst):
    c, e, m = i >> 2, (i >> 1) & 1, i & 1
    r, off = slab_addr(c, e, m)
    for tt in range(2): k.e(f'ds_read_b64_tr_b16 {R(t,dst+2*tt,2)}, v{r} offset:{off + tt*1024}')
AO, BO = 48, 80
for i in range(7): slab_frag(i, 'v', AO+4*i)
set_flag(0)
stamp()
k.e('s_waitcnt lgkmcnt(8)')
slab_frag(7, 'v', AO+28)
k.e(f's_lshl_b32 s{T4}, s{SN}, 15')
k.e(f's_lshl_b32 s{T1}, s{SKQ}, 10')
k.e(f's_add_u32 s{T4}, s{T4}, s{T1}')
k.e(f'v_permlane32_swap_b32 v{XRES}, v{XRES+2}')
k.e(f'v_permlane32_swap_b32 v{XRES+1}, v{XRES+3}')
AX, B2R = 112, 116
k.srd(R_B, P_B1, 1376*2)
k.srd(R_D, P_B2, 1024)
L_RED = L_O[1]
k.e(f's_mul_i32 s{T0}, s{SN}, {4*3*2048}')
k.e(f's_add_u32 s{T0}, s{T0}, {L_RED}')
k.e(f'v_add_u32 v14, s{T0}, v{VL16}')
k.e(f's_mul_i32 s{T1}, s{SKQ}, {3*2048}')
k.e(f'v_add_u32 v15, s{T1}, v14')
poll_flags(0)
stamp()
for s_ in range(8):
    k.e(f's_add_u32 s{T7}, s{T4}, {C_O + s_*4096}')
    k.e(f'buffer_load_dwordx4 {v(BO+4*s_,4)}, v{VL16}, {srd(R_CL)}, s{T7} offen {LSC}')
k.e(f'v_and_b32 v2, 31, v{VL}')
k.e('v_lshlrev_b32 v2, 1, v2')
k.e(f'buffer_load_ushort v{AX+2}, v2, {srd(R_B)}, s{SW1G} offen')
k.e(f'v_lshlrev_b32 v3, 3, v{VH}')
k.e(f's_and_b32 s{T0}, s{SROW}, 0x3ff')
k.e(f'buffer_load_dwordx2 {v(B2R,2)}, v3, {srd(R_D)}, s{T0} offen')
k.e(f'buffer_load_dwordx2 {v(B2R+2,2)}, v3, {srd(R_D)}, s{T0} offen offset:16')
for s_ in range(8):
    lg = 'lgkmcnt(0)' if s_ == 0 else (f'lgkmcnt({4*(7-s_)})' if s_ >= 4 else '')
    k.e(f's_waitcnt vmcnt({7-s_+3}) {lg}')
    for m in range(2): mf(16+16*m, AO+4*((2*s_+m) % 8), BO+4*s_, None if s_ == 0 else 16+16*m)
    if s_ < 4:
        if s_ == 3: k.e('s_waitcnt lgkmcnt(8)')
        for m in range(2): slab_frag(2*s_+8+m, 'v', AO+4*(2*s_+m))
stamp()
def reduce4(own):
    labs = [k.label('rq') for _ in range(4)]; lj = k.label('rj')
    for q in range(1, 4):
        k.e(f's_cmp_eq_u32 s{SKQ}, {q}')
        k.e(f's_cbranch_scc1 {labs[q]}')
    for q in range(4):
        k.e(f'{labs[q]}:')
        for d in range(4):
            if d == q: continue
            idx = q if q < d else q - 1
            for hh in range(2): k.e(f'ds_write_b128 v14, {v(16+8*d+4*hh,4)} offset:{(d*3+idx)*2048 + hh*1024}')
        for r in range(0, 8, 2): k.e(f'v_pk_add_f32 {v(own+r,2)}, {v(own+r,2)}, {v(16+8*q+r,2)}')
        if q < 3: k.e(f's_branch {lj}')
    k.e(f'{lj}:')
    k.e('s_waitcnt lgkmcnt(0)')
    k.e('s_barrier')
    for q in range(6): k.e(f'ds_read_b128 {v(48+4*q,4)}, v15 offset:{q*1024}')
def reduce4_fin(own):
    for p in range(3):
        k.e(f's_waitcnt lgkmcnt({4-2*p})')
        for r in range(0, 8, 2): k.e(f'v_pk_add_f32 {v(own+r,2)}, {v(own+r,2)}, {v(48+8*p+r,2)}')
for r in range(4):
    k.e(f'v_lshlrev_b32 v{96+2*r}, 16, v{XRES+r}')
    k.e(f'v_and_b32 v{97+2*r}, 0xffff0000, v{XRES+r}')
VSTAT = 80
k.e(f'v_and_b32 v12, 31, v{VL}')
k.e(f'v_lshlrev_b32 v{VSTAT}, 4, v12')
k.e(f'v_lshl_add_u32 v2, v{VH}, 10, v{VSTAT}')
k.e('v_mov_b32 v3, 0')
L_CNT = 149504
k.e(f'v_mov_b32 v81, {L_CNT}')
k.e('ds_write_b32 v2, v3 offset:12')
k.e('ds_write_b32 v81, v3')
k.e('ds_write_b32 v81, v3 offset:4')
k.e('ds_write_b32 v81, v3 offset:8')
k.e('ds_write_b32 v81, v3 offset:12')
k.e('ds_write_b32 v81, v3 offset:16')
reduce4(96)
k.e('v_mov_b32 v24, 0')
k.e('v_mov_b32 v25, 0')
k.e(f's_add_u32 s{T4}, s{SFRAG}, {C_H:#x}')
k.e(f's_lshr_b32 s{T5}, s{SFRAG}, 2')
k.e(f's_add_u32 s{T5}, s{T5}, {C_S2:#x}')
k.e(f'v_lshlrev_b32 v12, 2, v{VL}')
reduce4_fin(96)
for r in range(4): k.e(f'v_cvt_pk_bf16_f32 v{XRES+r}, v{96+2*r}, v{97+2*r}')
pub_store([f'buffer_store_dwordx4 {v(XRES,4)}, v{VL16}, {srd(R_CL)}, s{T4} offen'])
for r in range(4):
    k.e(f'v_dot2c_f32_bf16 v24, s{SONE}, v{XRES+r}')
    k.e(f'v_dot2c_f32_bf16 v25, v{XRES+r}, v{XRES+r}')
k.e('s_nop 2')
k.e('v_permlane32_swap_b32 v24, v25')
k.e('s_nop 0')
k.e('v_add_f32 v24, v24, v25')
pub_store([f'buffer_store_dword v24, v12, {srd(R_CL)}, s{T5} offen'])
k.e(f'v_mov_b32 v{CSA+1}, v{CSA}')
k.e('s_nop 1')
k.e(f'v_permlane32_swap_b32 v{CSA}, v{CSA+1}')
k.e('s_nop 0')
k.e(f'v_add_f32 v{CSA}, v{CSA}, v{CSA+1}')
set_flag(1)
stamp()
k.e(f'v_cvt_pk_bf16_f32 v12, v{CSA}, v{CSA}')
k.e('v_and_b32 v13, 0xffff0000, v12')
k.e(f'v_sub_f32 v13, v{CSA}, v13')
k.e(f'v_cvt_pk_bf16_f32 v{AX}, v{CSA}, v13')
k.e('v_and_b32 v12, 0xffff, v12')
k.e(f'v_lshl_or_b32 v{AX+1}, v{AX+2}, 16, v12')
k.e(f'v_mov_b32 v{AX+3}, 0')
k.e('s_mov_b32 exec_lo, 0')
for r in range(3): k.e(f'v_mov_b32 v{AX+r}, 0')
k.e('s_mov_b32 exec_lo, -1')
k.e(f'v_add_u32 v82, {L_O[0]}, v{VL16}')
k.e(f'v_add_u32 v83, {L_O[1]}, v{VL16}')
poll_flags(1)
stamp()
def h_piece(pc): dma(VL16, R_CL, SW10, L_O[pc >> 2] + (pc & 3)*8192, SW10, C_H + pc*8192, LSC)
for pc in range(2): h_piece(pc)
for u in range(2): dma(VL16, R_CL, SW10, L_X + u*8192, SW10, C_S2 + u*8192, LSC)
for pc in range(2, 4): h_piece(pc)
U0, U1, FB, TMP = 16, 32, 48, 64
BX = [84, 88]; KC = [92, 96]
def gelu_ops(u, kc, packed=False):
    ops = []
    def grp(rs):
        o = []
        if packed:
            for r in rs[::2]: o.append(f'v_pk_mul_f32 {v(TMP+r,2)}, {v(u+r,2)}, {v(u+r,2)}')
            for r in rs[::2]: o.append(f'v_pk_fma_f32 {v(TMP+r,2)}, {v(TMP+r,2)}, {v(kc,2)}, {v(kc,2)} op_sel:[0,1,0] op_sel_hi:[1,1,0]')
            for r in rs[::2]: o.append(f'v_pk_mul_f32 {v(TMP+r,2)}, {v(TMP+r,2)}, {v(u+r,2)}')
            for r in rs: o.append(f'v_exp_f32 v{TMP+r}, v{TMP+r}')
            for r in rs[::2]: o.append(f'v_pk_fma_f32 {v(TMP+r,2)}, {v(TMP+r,2)}, {v(kc+2,2)}, {v(kc+2,2)}')
            for r in rs: o.append(f'v_rcp_f32 v{TMP+r}, v{TMP+r}')
            for r in rs[::2]: o.append(f'v_pk_mul_f32 {v(TMP+r,2)}, {v(TMP+r,2)}, {v(u+r,2)}')
            return o
        for r in rs: o.append(f'v_mul_f32 v{TMP+r}, v{u+r}, v{u+r}')
        for r in rs: o.append(f'v_fma_f32 v{TMP+r}, v{TMP+r}, v{kc+1}, v{kc}')
        for r in rs: o.append(f'v_mul_f32 v{TMP+r}, v{TMP+r}, v{u+r}')
        for r in rs: o.append(f'v_exp_f32 v{TMP+r}, v{TMP+r}')
        for r in rs: o.append(f'v_fma_f32 v{TMP+r}, v{TMP+r}, v{kc+2}, v{kc+2}')
        for r in rs: o.append(f'v_rcp_f32 v{TMP+r}, v{TMP+r}')
        for r in rs: o.append(f'v_mul_f32 v{TMP+r}, v{u+r}, v{TMP+r}')
        return o
    g = 8 if packed else 4
    for q in range(0, 16, g): ops += grp(list(range(q, q+g)))
    for r in range(8): ops.append(f'v_cvt_pk_bf16_f32 v{u+r}, v{TMP+2*r}, v{TMP+2*r+1}')
    return ops
def T0f(j): return 5*j + min(j, 3)
GROUP_ROW = [32*(T0f(j)+4+m) for j in range(3) for m in range(2)] + [32*(T0f(j)+4) for j in range(3, 8)]
def vrow(g):
    return 32*(T0f(g >> 2) + (g & 3)) if g < 32 else GROUP_ROW[g-32]
def f_store_full(u, n):
    k.e(f's_lshl_b32 s{T5}, s{SJ}, 13')
    k.e(f's_add_u32 s{T5}, s{T5}, s{SWL}')
    k.e(f's_add_u32 s{T5}, s{T5}, {C_F + n*65536:#x}')
    pub_store([f'buffer_store_dwordx4 {v(u,4)}, v{VL16}, {srd(R_CL)}, s{T5} offen',
               f'buffer_store_dwordx4 {v(u+4,4)}, v{VL16}, {srd(R_CL)}, s{T5} offen offset:1024'])
def mm_stream(seq, fill=None, hooks=None, extra=None, post=None):
    n = len(seq)
    log = []
    def rd(q):
        k.e(f'ds_read_b128 {v(FB+4*(q%4),4)}, v{82+seq[q][2]} offset:{seq[q][1]*1024}')
        log.append(q)
    for q in range(min(3, n)): rd(q)
    fi = 0
    for q in range(n):
        if hooks and q in hooks:
            hooks[q]()
            if extra and q in extra: log.extend([-1]*extra[q])
        if q+3 < n: rd(q+3)
        k.e(f's_waitcnt lgkmcnt({len(log) - 1 - log.index(q)})')
        acc, ks, _ = seq[q]
        mf(acc, 4*ks, FB+4*(q%4), None if ks == 0 else acc, at='a')
        if post and q in post: post[q]()
        if fill:
            f0, f1, ops = fill
            if f0 <= q < f1:
                tgt = (q - f0 + 1) * len(ops) // (f1 - f0)
                while fi < tgt:
                    k.e(ops[fi]); fi += 1
def w2_frag(i): slab_frag(i, 'a', 4*i)
def cnt_add(idx):
    k.e('s_mov_b64 exec, 1')
    k.e(f'ds_add_u32 v81, v100 offset:{4*idx}')
    k.e('s_mov_b64 exec, -1')
def cnt_wait(idx, n, va=81, vt=101):
    l = k.label('cw')
    k.e(f'{l}:')
    k.e(f'ds_read_b32 v{vt}, v{va} offset:{4*idx}')
    k.e('s_waitcnt lgkmcnt(0)')
    k.e(f'v_readfirstlane_b32 s{T0}, v{vt}')
    k.e('s_nop 3')
    k.e(f's_cmp_lt_u32 s{T0}, {n}')
    k.e(f's_cbranch_scc1 {l}')
def rd_stats(ns, slots):
    l = k.label('sw')
    k.e(f'{l}:')
    for n_, sl in zip(ns, slots): k.e(f'ds_read_b128 {v(BX[sl],4)}, v{VSTAT} offset:{n_*1024}')
    for n_, sl in zip(ns, slots): k.e(f'ds_read_b128 {v(KC[sl],4)}, v{VSTAT} offset:{n_*1024+512}')
    k.e('s_waitcnt lgkmcnt(0)')
    if len(slots) == 2: k.e(f'v_and_b32 v101, v{BX[0]+3}, v{BX[1]+3}')
    k.e(f'v_cmp_eq_u32 vcc, 0, v{101 if len(slots) == 2 else BX[slots[0]]+3}')
    k.e('s_nop 1')
    k.e('s_cmp_lg_u64 vcc, 0')
    k.e(f's_cbranch_scc1 {l}')
L_C10 = 151552
CH_LDS = {0: L_WO[0], 1: L_WO[0]+16384, 2: L_WO[1], 3: L_WO[1]+16384, 4: L_O[0], 5: L_O[0]+16384, 6: L_WO[0], 7: L_WO[0]+16384, 8: L_X, 9: L_WO[1], 10: L_C10}
def w2_group(g):
    dma(VOW, R_C, T3, CH_LDS[g >> 2] + (g & 3)*4096, T2, vrow(g)*1024)
def w2_regs():
    k.e(f's_and_b32 s{T3}, s{SW}, 3')
    k.e(f's_lshl_b32 s{T2}, s{T3}, 13')
    k.e(f's_lshl_b32 s{T1}, s{SJ}, 7')
    k.e(f's_add_u32 s{T2}, s{T2}, s{T1}')
    k.e(f's_lshl_b32 s{T3}, s{T3}, 10')
k.e('v_mov_b32 v100, 1')
w2_regs()
lhalf, lf2 = k.label('half'), k.label('ffn2')
k.e(f's_cmp_ge_u32 s{SW}, 4')
k.e(f's_cbranch_scc1 {lhalf}')
stamp(40)
k.e('s_waitcnt vmcnt(4)')
k.e('s_barrier')
stamp(41)
def b15():
    k.e('s_waitcnt vmcnt(0)')
    k.e('s_barrier')
mm_stream([(U0, ks, 0) for ks in range(32)], hooks={E('B15', 8): b15})
cnt_add(4)
stamp(44)
rd_stats([0, 1], [0, 1])
stamp(45)
mf(U0, AX, BX[0], U0)
cnt_wait(0, 4)
k.e('s_nop 4')
for o in gelu_ops(U0, KC[0]): k.e(o)
f_store_full(U0, 0)
cnt_wait(1, 4)
stamp(46)
def c_done():
    k.e('s_waitcnt lgkmcnt(0)'); cnt_add(2)
hooks = {1+i: (lambda i=i: w2_frag(i)) for i in range(16)}
extra = {1+i: 2 for i in range(16)}
hooks[18] = c_done; extra[18] = 1
mm_stream([(U1, ks, 1) for ks in range(32)], hooks=hooks, extra=extra, post={1: lambda: mf(U1, AX, BX[1], U1)})
stamp()
k.e('s_nop 7')
k.e('s_nop 3')
for o in gelu_ops(U1, KC[1], True): k.e(o)
f_store_full(U1, 1)
stamp(49)
set_flag(2)
k.e(f's_branch {lf2}')
k.e(f'{lhalf}:')
stamp(40)
k.e('s_waitcnt vmcnt(4)')
k.e('s_barrier')
stamp(41)
for pc in range(8): dma(VL16, R_CL, T3, L_O[1] + pc*4096, T3, C_H + 32768 + pc*4096, LSC)
stamp(42)
k.e('s_waitcnt vmcnt(8)')
k.e('s_barrier')
stamp(43)
lns = k.label('nostat')
k.e(f's_cmp_lt_u32 s{SW}, 6')
k.e(f's_cbranch_scc1 {lns}')
k.e('s_setprio 2')
k.e(f's_lshl_b32 s{T0}, s{SM}, 13')
k.e(f's_add_u32 s{T0}, s{T0}, {L_X}')
k.e(f'v_lshl_add_u32 v2, v{VL}, 2, s{T0}')
for q in range(16):
    if q == 12: k.e('s_waitcnt lgkmcnt(8)')
    k.e(f'ds_read2st64_b32 {v(U0+2*q,2)}, v2 offset0:{2*q} offset1:{2*q+1}')
k.e(f's_lshl_b32 s{T0}, s{SM}, 10')
k.e(f'v_add_u32 v3, s{T0}, v{VSTAT}')
k.e('v_mov_b32 v101, 0')
k.e('v_mov_b32 v87, 1')
k.e('s_waitcnt lgkmcnt(0)')
for q in range(16): k.e(f'v_add_f32 v{U0+q}, v{U0+q}, v{U0+16+q}')
for q in range(8): k.e(f'v_add_f32 v{U0+q}, v{U0+q}, v{U0+8+q}')
for q in range(4): k.e(f'v_add_f32 v{U0+q}, v{U0+q}, v{U0+4+q}')
for q in range(2): k.e(f'v_add_f32 v{U0+q}, v{U0+q}, v{U0+2+q}')
k.e(f'v_add_f32 v12, v{U0}, v{U0+1}')
k.e('v_mov_b32 v13, v12')
k.e('s_nop 1')
k.e('v_permlane32_swap_b32 v12, v13')
k.e('s_nop 1')
k.e(f'v_mul_f32 v12, {f2u(-1/512):#x}, v12')
k.e(f'v_mul_f32 v13, {f2u(1/512):#x}, v13')
k.e('v_fma_f32 v13, -v12, v12, v13')
k.e('v_max_f32 v13, 0, v13')
k.e(f'v_add_f32 v13, {f2u(EPS):#x}, v13')
k.e('v_rsq_f32 v16, v13')
k.e('v_cvt_pk_bf16_f32 v84, v12, v12')
k.e('v_mul_f32 v94, v13, v16')
k.e('v_and_b32 v17, 0xffff0000, v84')
k.e('v_sub_f32 v17, v12, v17')
k.e('v_cvt_pk_bf16_f32 v85, v17, v94')
k.e('v_mov_b32 v95, v94')
k.e('v_and_b32 v17, 0xffff0000, v85')
k.e('v_sub_f32 v17, v94, v17')
k.e('v_cvt_pk_bf16_f32 v86, v17, v101')
k.e(f'v_mul_f32 v92, {f2u(GC0):#x}, v16')
k.e('v_mul_f32 v93, v16, v16')
k.e('v_mul_f32 v93, v93, v92')
k.e(f'v_mul_f32 v93, {f2u(0.044715):#x}, v93')
k.e('ds_write_b128 v3, v[92:95] offset:512')
k.e('ds_write_b128 v3, v[84:87]')
k.e('s_setprio 0')
k.e(f'{lns}:')
G1 = list(range(16)) + [40, 41, 42]
for g in G1[:4]: w2_group(g)
k.e('s_waitcnt vmcnt(4)')
cnt_add(0)
stamp(44)
for g in G1[4:]: w2_group(g)
stamp(45)
k.e(f's_mul_i32 s{T0}, s{SKH}, {L_O[1]-L_O[0]}')
k.e(f'v_add_u32 v82, s{T0}, v82')
k.e(f's_lshl_b32 s{T0}, s{SKH}, 10')
k.e(f'v_add_u32 v102, s{T0}, v{VSTAT}')
cnt_wait(0, 4)
k.e(f's_setprio {E("HPRIO", 1)}')
stamp(46)
def c_b1():
    k.e('s_waitcnt vmcnt(0)'); cnt_add(1)
def h_stats():
    rd_stats([0, 1], [0, 1])
    k.e(f'ds_read_b128 {v(BX[0],4)}, v102')
    k.e(f'ds_read_b128 {v(KC[0],4)}, v102 offset:512')
hooks = {6: c_b1, 12: h_stats, 15: lambda: cnt_wait(1, 4)}
extra = {6: 1, 12: 2}
for i in range(16):
    hooks[16+i] = (lambda i=i: w2_frag(i)); extra[16+i] = 2
mm_stream([(U0, ks, 0) for ks in range(32)], hooks=hooks, extra=extra, post={20: lambda: mf(U0, AX, BX[0], U0)})
stamp(12)
k.e('s_setprio 0')
k.e('s_waitcnt lgkmcnt(0)')
cnt_add(2)
cnt_add(4)
for g in range(32, 36): w2_group(g)
lno = k.label('idle')
k.e(f's_cmp_ge_u32 s{SJ}, 3')
k.e(f's_cselect_b32 s{T0}, s{SM}, 0')
k.e(f's_cmp_lg_u32 s{T0}, 0')
k.e(f's_cbranch_scc1 {lno}')
k.e(f's_lshl_b32 s{T0}, s{SJ}, 1')
k.e(f's_add_u32 s{T0}, s{T0}, s{SM}')
k.e(f's_add_u32 s{T1}, s{SJ}, 3')
k.e(f's_min_u32 s{T5}, s{T0}, s{T1}')
k.e(f's_mul_i32 s{T0}, s{SKH}, 11')
k.e(f's_add_u32 s{T5}, s{T5}, s{T0}')
k.e(f's_lshl_b32 s{T5}, s{T5}, 11')
for o in gelu_ops(U0, KC[0]): k.e(o)
pub_store([f'buffer_store_dwordx4 {v(U0,4)}, v{VL16}, {srd(R_CL)}, s{T5} offen',
           f'buffer_store_dwordx4 {v(U0+4,4)}, v{VL16}, {srd(R_CL)}, s{T5} offen offset:1024'])
k.e(f'{lno}:')
stamp(49)
cnt_wait(4, 8)
for g in range(16, 24): w2_group(g)
set_flag(2, 8)
stamp(50)
cnt_wait(2, 8)
stamp(52)
for g in list(range(24, 32)) + list(range(36, 40)): w2_group(g)
k.e('s_waitcnt vmcnt(0)')
cnt_add(3)
k.e(f'{lf2}:')
stamp()
k.srd(R_A, P_OUT, 2048*1024)
SFG, SFG2 = 74, 75
k.e(f's_lshl_b32 s{T0}, s{SKQ}, 10')
k.e(f's_lshl_b32 s{SFG}, s{SN}, 16')
k.e(f's_add_u32 s{SFG}, s{SFG}, s{T0}')
k.e(f's_mul_i32 s{SFG2}, s{SN}, {22*1024}')
k.e(f's_add_u32 s{SFG2}, s{SFG2}, s{T0}')
k.e(f'v_add_u32 v12, {2*65536}, v120')
k.e(f'v_add_u32 v13, {2*65536}, v121')
k.e('v_mov_b32 v112, v81')
poll_flags(2)
stamp()
NB = 16; BR = 48
def ldB(s_):
    if s_ < 16: k.e(f's_add_u32 s{T7}, s{SFG}, {C_F + s_*4096}')
    else: k.e(f's_add_u32 s{T7}, s{SFG2}, {C_O + (s_-16)*4096}')
    k.e(f'buffer_load_dwordx4 {v(BR+4*(s_%NB),4)}, v{VL16}, {srd(R_CL)}, s{T7} offen {LSC}')
def rdA(s_):
    c, e = s_ >> 1, s_ & 1
    off = CH_LDS[c] - L_WO[0] + e*8192
    base = [120, 124, 12][off >> 16]
    for m in range(2):
        for tt in range(2): k.e(f'ds_read_b64_tr_b16 {a_(8*(s_%16)+4*m+2*tt,2)}, v{base+m} offset:{(off & 0xffff) + tt*1024}')
N0 = E('N0', 6)
LA = 6
nld = 0
for s_ in range(N0): ldB(s_); nld += 1
llast = k.label('last')
for s_ in range(22):
    if s_ == 8 - LA: cnt_wait(3, 4, 112, 113)
    if s_ == 21:
        k.e(f's_cmp_ge_u32 s{SKQ}, 2')
        k.e(f's_cbranch_scc1 {llast}')
    lg = ''
    if s_ >= 8 - LA + 2:
        last_issued = min(s_ - 1 + LA, 21)
        lg = f' lgkmcnt({min(8, 4*(last_issued - s_)) if s_ >= 8 else 8})'
    k.e(f's_waitcnt vmcnt({nld-1-s_}){lg}')
    for m in range(2):
        mf(16+16*m, 8*(s_%16)+4*m, BR+4*(s_%NB), None if s_ == 0 else 16+16*m, at='a')
        if nld < 22 and nld - s_ < NB:
            ldB(nld); nld += 1
    if 8 <= s_+LA < 22: rdA(s_+LA)
k.e(f'{llast}:')
k.e('s_waitcnt vmcnt(0) lgkmcnt(0)')
stamp()
for r in range(4):
    k.e(f'v_lshlrev_b32 v{96+2*r}, 16, v{XRES+r}')
    k.e(f'v_and_b32 v{97+2*r}, 0xffff0000, v{XRES+r}')
    k.e(f'v_lshlrev_b32 v{104+2*r}, 16, v{B2R+r}')
    k.e(f'v_and_b32 v{105+2*r}, 0xffff0000, v{B2R+r}')
for r in range(8): k.e(f'v_add_f32 v{96+r}, v{96+r}, v{104+r}')
k.e(f'v_subrev_u32 v14, {16384}, v14')
k.e(f'v_subrev_u32 v15, {16384}, v15')
reduce4(96)
reduce4_fin(96)
for r in range(4): k.e(f'v_cvt_pk_bf16_f32 v{24+r}, v{96+2*r}, v{97+2*r}')
k.e('s_nop 1')
k.e('v_permlane32_swap_b32 v24, v26')
k.e('v_permlane32_swap_b32 v25, v27')
k.e(f'buffer_store_dwordx4 v[24:27], v{VROW}, {srd(R_A)}, s{SROW} offen')
stamp()
stamp_flush()
k.e(f'{LEND}:')
k.e('s_endpgm')
k.e(f'{lfb}:')
k.e(f's_mov_b32 s{T0}, {WS_K:#x}')
k.e(f'v_mov_b32 v{MA}, 0xff800000')
k.e(f'v_mov_b32 v{MB}, 0xff800000')
lf = k.label('fbl')
k.e(f'{lf}:')
k.e(f'buffer_load_dwordx4 v[12:15], v{VL16}, {srd(R_G)}, s{T0} offen sc1')
k.e('s_waitcnt vmcnt(0)')
mf(SA, 12, QA)
mf(SB, 12, QB)
k.e('s_nop 15')
for r in range(0, 16, 2): k.e(f'v_max3_f32 v{MA}, v{MA}, v{SA+r}, v{SA+r+1}')
for r in range(0, 16, 2): k.e(f'v_max3_f32 v{MB}, v{MB}, v{SB+r}, v{SB+r+1}')
k.e(f's_add_u32 s{T0}, s{T0}, 1024')
k.e(f's_cmp_lt_u32 s{T0}, {WS_K+65536:#x}')
k.e(f's_cbranch_scc1 {lf}')
mf(SA, KB[0], QA)
k.e(f'v_mov_b32 v2, v{MA}')
k.e(f'v_mov_b32 v3, v{MB}')
k.e('s_nop 1')
k.e(f'v_permlane32_swap_b32 v{MA}, v2')
k.e(f'v_permlane32_swap_b32 v{MB}, v3')
k.e('s_nop 1')
k.e(f'v_max_f32 v{MA}, v{MA}, v2')
k.e(f'v_max_f32 v{MB}, v{MB}, v3')
k.e('s_nop 7')
attention(True)
k.e(f's_branch {lepi}')

hdr = open('header.txt').read()
txt = emit_file(hdr, [], [k])
txt = txt.replace('.amdgcn_target', '; @launch grid=(256,1,1) block=(512,1,1) lds=163840\n.amdgcn_target', 1)
open(sys.argv[1], 'w').write(txt)
```
